```python
import torch

def _softmax(x, axis=-1):
    return torch.softmax(x, dim=axis)
def _gelu(x):
    return torch.nn.functional.gelu(x, approximate="tanh")
def _silu(x):
    return torch.nn.functional.silu(x)
def _sigmoid(x):
    return torch.sigmoid(x)
def _layernorm(x, axis=-1, eps=1e-5):
    m = x.mean(dim=axis, keepdim=True)
    v = x.var(dim=axis, keepdim=True, unbiased=False)
    return (x - m) / torch.sqrt(v + eps)
def _scatter_add(tgt, idx, src, axis=0):
    return tgt.clone().index_add_(axis, idx, src)
def _segment_sum(src, seg, n):
    out = torch.zeros((n,) + src.shape[1:], dtype=src.dtype)
    return out.index_add_(0, seg, src)
def _pad(x, pw):
    flat = tuple(v for pair in reversed(pw) for v in pair)
    return torch.nn.functional.pad(x, flat)

kernel_name = 'gated_mix__sliding_block__mixer_token_mlp__prompt'

def setup_inputs():

    _w = (lambda a: (lambda t: t.to(torch.bfloat16) if t.is_floating_point() else t)(torch.as_tensor(a)))
    def _A_setup():
        B, S, D = 1, 2048, 512
        return {
            "x": _w((lambda *s: torch.randn(*s, dtype=torch.bfloat16) * 0.05)(B, S, D)),
            "wqkv": _w((lambda *s: torch.randn(*s, dtype=torch.bfloat16) * 0.8)(D, 3 * D)),
            "wo": _w((lambda *s: torch.randn(*s, dtype=torch.bfloat16) * 0.05)(D, D)),
        }
    _A_in = _A_setup()

    def _B_setup():
        B, S, D, F = 1, 2048, 512, 1376
        return {
            "x": _w((lambda *s: torch.randn(*s, dtype=torch.bfloat16) * 0.05)(B, S, D)),
            "w1": _w((lambda *s: torch.randn(*s, dtype=torch.bfloat16) * 3.2)(S, F) * (S ** -0.5)),
            "b1": _w((lambda *s: torch.randn(*s, dtype=torch.bfloat16) * 3.2)(F) * 0.02),
            "w2": _w((lambda *s: torch.randn(*s, dtype=torch.bfloat16) * 0.1)(F, S) * (F ** -0.5)),
            "b2": _w((lambda *s: torch.randn(*s, dtype=torch.bfloat16) * 0.1)(S) * 0.02),
        }
    _B_in = _B_setup()

    return {
        "A_x": _A_in["x"],
        "A_wqkv": _A_in["wqkv"],
        "A_wo": _A_in["wo"],
        "B_x": _B_in["x"],
        "B_w1": _B_in["w1"],
        "B_b1": _B_in["b1"],
        "B_w2": _B_in["w2"],
        "B_b2": _B_in["b2"],
        "gate_w": _w((lambda *s: torch.randn(*s, dtype=torch.bfloat16) * 0.05)(512) * 16.0),
    }

def reference(A_x, A_wqkv, A_wo, B_x, B_w1, B_b1, B_w2, B_b2, gate_w):
    def _A_ref(x, wqkv, wo):
        B, S, D = x.shape
        H = 32; Dh = D // H; W = 256
        qkv = (lambda x, *d: x.permute(*d))((x @ wqkv).reshape(B, S, 3, H, Dh), 2, 0, 3, 1, 4)
        q, k, v = qkv[0], qkv[1], qkv[2]
        scores = torch.einsum("bhqd,bhkd->bhqk", q, k) * (Dh ** -0.5)
        idx = torch.arange(S)
        mask = (idx[:, None] - idx[None, :] >= 0) & (idx[:, None] - idx[None, :] < W)
        scores = torch.where(mask[None, None], scores, -1e9)
        p = _softmax(scores, axis=-1)
        o = torch.einsum("bhqk,bhkd->bhqd", p, v)
        return (lambda x, *d: x.permute(*d))(o, 0, 2, 1, 3).reshape(B, S, D) @ wo

    def _B_ref(x, w1, b1, w2, b2):
        B, S, D = x.shape
        h = _layernorm(x, axis=-1)
        u = torch.einsum("bsd,sf->bdf", h, w1) + b1
        u = _gelu(u)
        y = torch.einsum("bdf,fs->bds", u, w2) + b2
        return (lambda x, *d: x.permute(*d))(y, 0, 2, 1)

    x = A_x
    g = _sigmoid((x * gate_w).sum(-1, keepdims=True))
    a = _A_ref(x, A_wqkv, A_wo)
    b = _B_ref(x, B_w1, B_b1, B_w2, B_b2)
    return g * a + (1 - g) * b
```

```python
class Asm:
    def __init__(self):
        self.lines = []
        self.lbl = 0
    def __call__(self, s):
        for l in s.strip("\n").split("\n"):
            self.lines.append("    " + l.strip())
    def label(self, name):
        self.lines.append(name + ":")
    def newlabel(self, p="L"):
        self.lbl += 1
        return "%s_%d" % (p, self.lbl)
    def text(self):
        return "\n".join(self.lines) + "\n"

def vr(base, n):
    return "v[%d:%d]" % (base, base + n - 1) if n > 1 else "v%d" % base
def sr(base, n):
    return "s[%d:%d]" % (base, base + n - 1) if n > 1 else "s%d" % base

def kernel_header(name):
    return ".globl %s\n.p2align 8\n.type %s,@function\n%s:\n" % (name, name, name)

def kernel_desc(name, vgpr, sgpr=96):
    acc = (vgpr + 3) // 4 * 4
    return """.p2align 6
.amdhsa_kernel %s
  .amdhsa_next_free_vgpr %d
  .amdhsa_next_free_sgpr %d
  .amdhsa_accum_offset %d
  .amdhsa_group_segment_fixed_size 0
  .amdhsa_kernarg_size 96
  .amdhsa_user_sgpr_count 2
  .amdhsa_user_sgpr_kernarg_segment_ptr 1
  .amdhsa_system_sgpr_workgroup_id_x 1
.end_amdhsa_kernel
""" % (name, vgpr, sgpr, acc)
```

```python
import sys, struct
from asmlib import *

QF = 0
KF = 2 << 20
VF = 4 << 20
HT = 6 << 20
W1F = 8 << 20
GW = 14 << 20
OF = 15 << 20
UF = 17 << 20
WS_USED = 19 << 20

def f32(x):
    return "0x%08x" % struct.unpack("<I", struct.pack("<f", x))[0]

QSCALE = 0.25 * 1.4426950408889634

STAMPS = False
import os
EXP = os.environ.get("EXP", "")
TS = 24 << 20
def stamp(a, n):
    if STAMPS: a("s_memrealtime s[%d:%d]" % (70 + 2 * n, 71 + 2 * n))
def stamp_flush(a, kidx, wsptr, nst=6):
    if not STAMPS: return
    stamp(a, nst - 1)
    a("s_mov_b32 s84, s%d" % wsptr)
    a("s_and_b32 s85, s%d, 0xffff" % (wsptr + 1))
    a("s_mov_b32 s86, 0x%x" % (32 << 20))
    a("s_mov_b32 s87, 0x00020000")
    a("v_lshrrev_b32 v0, 6, v0")
    a("s_lshl_b32 s88, s2, 4")
    a("v_add_u32 v0, s88, v0")
    a("v_lshlrev_b32 v0, 5, v0")
    a("s_waitcnt lgkmcnt(0)")
    a("s_mov_b32 s88, %d" % (TS + (kidx << 20)))
    for i in range(nst):
        a("v_mov_b32 v1, s%d" % (70 + 2 * i))
        a("buffer_store_dword v1, v0, s[84:87], s88 offen offset:%d" % (4 * i))
        a("s_nop 1")

def srd(a, d, base, nrec):
    a("s_mov_b32 s%d, s%d" % (d, base))
    a("s_and_b32 s%d, s%d, 0xffff" % (d + 1, base + 1))
    a("s_mov_b32 s%d, %s" % (d + 2, nrec if isinstance(nrec, str) else "0x%x" % nrec))
    a("s_mov_b32 s%d, 0x00020000" % (d + 3))

def gen_k1():
    a = Asm()
    a("s_cmp_ge_u32 s2, 256")
    a("s_cbranch_scc1 K1_end")
    stamp(a, 0)
    a("s_load_dwordx4 s[4:7], s[0:1], 0")
    a("s_load_dwordx2 s[8:9], s[0:1], 32")
    a("s_load_dwordx2 s[10:11], s[0:1], 64")
    a("s_load_dwordx2 s[12:13], s[0:1], 88")
    a("v_and_b32 v1, 63, v0")
    a("v_lshrrev_b32 v2, 6, v0")
    a("s_and_b32 s34, s2, 7")
    a("v_readfirstlane_b32 s33, v2")
    a("s_lshr_b32 s35, s2, 3")
    a("s_cmp_ge_u32 s35, 24")
    a("s_cbranch_scc1 K1_aux")
    if "noqkv" in EXP: a("s_endpgm")
    a("s_mul_i32 s36, s35, 43")
    a("s_lshr_b32 s36, s36, 8")
    a("s_mul_i32 s37, s36, 6")
    a("s_sub_u32 s37, s35, s37")
    a("s_lshr_b32 s38, s34, 1")
    a("s_lshl_b32 s38, s38, 2")
    a("s_add_u32 s38, s38, s36")
    a("s_lshr_b32 s39, s37, 1")
    a("s_and_b32 s40, s34, 1")
    a("s_lshl_b32 s40, s40, 1")
    a("s_and_b32 s41, s37, 1")
    a("s_add_u32 s40, s40, s41")
    a("s_lshl_b32 s41, s39, 9")
    a("s_lshl_b32 s42, s40, 7")
    a("s_add_u32 s41, s41, s42")
    a("s_and_b32 s42, s33, 1")
    a("s_lshl_b32 s42, s42, 2")
    a("v_lshrrev_b32 v3, 4, v1")
    a("v_add_u32 v4, s42, v3")
    a("v_and_b32 v5, 7, v1")
    a("v_xor_b32 v4, v4, v5")
    a("v_lshrrev_b32 v5, 3, v1")
    a("v_lshlrev_b32 v5, 10, v5")
    a("v_lshl_add_u32 v10, v4, 4, v5")
    a("v_lshlrev_b32 v4, 2, v3")
    a("v_and_b32 v5, 15, v1")
    a("v_xor_b32 v4, v4, v5")
    a("v_mul_u32_u24 v5, 3072, v3")
    a("v_lshl_add_u32 v11, v4, 4, v5")
    a("s_lshl_b32 s43, s38, 7")
    a("s_lshl_b32 s44, s33, 3")
    a("s_add_u32 s43, s43, s44")
    a("s_lshl_b32 s43, s43, 10")
    a("s_mul_i32 s44, s33, 12288")
    a("s_lshl_b32 s45, s41, 1")
    a("s_add_u32 s44, s44, s45")
    a("s_lshl_b32 s45, s33, 10")
    a("s_waitcnt lgkmcnt(0)")
    srd(a, 16, 4, 2048 * 1024)
    srd(a, 20, 6, 512 * 3072)
    srd(a, 24, 12, WS_USED)

    def dma_stage(sx, sw, sm, inter=None):
        inter = list(inter or [])
        for u in range(4):
            a("s_add_u32 m0, s%d, %d" % (sm, u * 4096))
            a("s_add_u32 s50, s%d, %d" % (sx, u * 32768))
            a("buffer_load_dwordx4 v10, s[16:19], s50 offen lds")
            a("s_add_u32 m0, s%d, %d" % (sm, 65536 + u * 4096))
            a("s_add_u32 s50, s%d, %d" % (sw, u * 49152))
            a("buffer_load_dwordx4 v11, s[20:23], s50 offen lds")
            if inter: a(inter.pop(0))
        for i in inter: a(i)
    a("s_mov_b32 s46, s43")
    a("s_mov_b32 s47, s44")
    a("s_mov_b32 s48, s45")
    a("s_mov_b32 s49, 0")
    a.label("K1_pro")
    dma_stage(46, 47, 48)
    a("s_add_u32 s46, s46, 128")
    a("s_add_u32 s47, s47, 196608")
    a("s_add_u32 s48, s48, 16384")
    a("s_add_u32 s49, s49, 1")
    a("s_cmp_lt_u32 s49, 4")
    a("s_cbranch_scc1 K1_pro")
    stamp(a, 1)
    a("s_mov_b32 s48, s45")
    a("s_lshr_b32 s51, s33, 1")
    a("s_and_b32 s52, s33, 1")
    a("v_bfe_u32 v3, v1, 1, 3")
    a("v_lshrrev_b32 v4, 5, v1")
    a("v_xor_b32 v5, v3, v4")
    a("v_and_b32 v6, 31, v1")
    a("s_lshl_b32 s53, s51, 13")
    a("v_lshl_add_u32 v6, v6, 7, s53")
    for ks in range(4):
        a("v_xor_b32 v7, %d, v5" % (2 * ks))
        a("v_lshl_add_u32 v%d, v7, 4, v6" % (12 + ks))
    a("v_bfe_u32 v3, v1, 2, 2")
    a("v_lshl_add_u32 v5, v4, 3, v3")
    a("v_lshlrev_b32 v5, 8, v5")
    a("s_lshl_b32 s53, s52, 1")
    a("v_xor_b32 v6, s53, v3")
    a("v_lshl_add_u32 v5, v6, 6, v5")
    a("v_bfe_u32 v6, v1, 4, 1")
    a("v_lshl_add_u32 v5, v6, 5, v5")
    a("v_and_b32 v6, 3, v1")
    a("v_lshl_add_u32 v5, v6, 3, v5")
    a("v_add_u32 v16, 0x10000, v5")
    a("v_xor_b32 v17, 64, v16")
    for i in range(6): a("v_mov_b32 v%d, v%d" % (20 + i, 12 + i))
    ACC = 64
    for i in range(64): a("v_mov_b32 v%d, 0" % (ACC + i))
    XFR = 32
    def reads(ks, b):
        r = []
        if "noread" in EXP: return ["s_nop 0"]
        for t in range(2):
            if "nox" in EXP: continue
            r.append("ds_read_b128 %s, v%d offset:%d" % (vr(XFR + b * 16 + t * 4, 4), 20 + ks, t * 4096))
        for mt in range(2):
            for rd in range(2):
                if "notr" in EXP: continue
                r.append("ds_read_b64_tr_b16 %s, v%d offset:%d" % (vr(XFR + b * 16 + 8 + mt * 4 + rd * 2, 2), 24 + mt, ks * 4096 + rd * 1024))
        return r
    def mfmas(b, vtype):
        r = []
        for i in range(2):
            for j in range(2):
                acc = vr(ACC + (i * 2 + j) * 16, 16)
                xf = lambda t: vr(XFR + b * 16 + t * 4, 4)
                wf = lambda t: vr(XFR + b * 16 + 8 + t * 4, 4)
                if vtype: r.append("v_mfma_f32_32x32x16_bf16 %s, %s, %s, %s" % (acc, xf(i), wf(j), acc))
                else: r.append("v_mfma_f32_32x32x16_bf16 %s, %s, %s, %s" % (acc, wf(i), xf(j), acc))
        return r
    a("s_mov_b32 s49, 0")
    a("s_mov_b32 s54, 0")
    a("s_waitcnt vmcnt(24)")
    a("s_barrier")
    stamp(a, 2)
    for r in reads(0, 0): a(r)
    a("s_cmp_eq_u32 s39, 2")
    a("s_cbranch_scc1 K1_loop_v")
    for vtype in (0, 1):
        L = "K1_loop_v" if vtype else "K1_loop_qk"
        a.label(L)
        for ks in range(3):
            for r in reads(ks + 1, (ks + 1) & 1): a(r)
            a("s_waitcnt lgkmcnt(6)")
            if "nomfma" not in EXP:
                for m in mfmas(ks & 1, vtype): a(m)
        a("s_add_u32 s54, s54, 16384")
        a("s_and_b32 s54, s54, 0xffff")
        a("s_cmp_lt_u32 s49, 4")
        a("s_cselect_b32 s55, s46, 0x40000000")
        a("s_waitcnt vmcnt(%d) lgkmcnt(0)" % (0 if "nodma" in EXP else 16))
        a("s_barrier")
        for i in range(6): a("v_add_u32 v%d, s54, v%d" % (20 + i, 12 + i))
        for r in reads(0, 0): a(r)
        if "nodma" in EXP:
            if "nomfma" not in EXP:
                for m in mfmas(1, vtype): a(m)
        else:
            dma_stage(55, 47, 48, inter=mfmas(1, vtype) if "nomfma" not in EXP else None)
        a("s_add_u32 s46, s46, 128")
        a("s_add_u32 s47, s47, 196608")
        a("s_add_u32 s48, s48, 16384")
        a("s_and_b32 s48, s48, 0xffff")
        a("s_add_u32 s49, s49, 1")
        a("s_cmp_lt_u32 s49, 8")
        a("s_cbranch_scc1 %s" % L)
        stamp(a, 3)
        stamp(a, 4)
        a("s_waitcnt lgkmcnt(0)")
        a("s_lshl_b32 s53, s40, 3")
        a("s_lshl_b32 s54, s52, 2")
        a("s_add_u32 s53, s53, s54")
        a("s_lshl_b32 s53, s53, 16")
        a("s_lshl_b32 s54, s38, 2")
        a("s_lshl_b32 s55, s51, 1")
        a("s_add_u32 s54, s54, s55")
        a("s_lshl_b32 s54, s54, 10")
        a("s_add_u32 s53, s53, s54")
        a("s_lshl_b32 s54, s39, 21")
        a("s_add_u32 s53, s53, s54")
        if not vtype:
            a("v_lshlrev_b32 v3, 4, v1")
            a("s_cmp_eq_u32 s39, 0")
            a("s_cselect_b32 s56, %s, 1.0" % f32(QSCALE))
        else:
            a("v_bfe_u32 v3, v1, 4, 1")
            a("v_lshlrev_b32 v3, 16, v3")
            a("v_lshrrev_b32 v4, 5, v1")
            a("v_lshl_add_u32 v3, v4, 8, v3")
            a("v_and_b32 v4, 15, v1")
            a("v_lshl_add_u32 v3, v4, 4, v3")
        a("s_nop 7")
        a("s_nop 7")
        for i in range(2):
            for j in range(2):
                base = ACC + (i * 2 + j) * 16
                for half in range(2):
                    t = 32 + ((i * 4 + j * 2 + half) % 4) * 4
                    for k in range(4):
                        r0 = base + half * 8 + 2 * k
                        if not vtype:
                            a("v_mul_f32 v%d, s56, v%d" % (r0, r0))
                            a("v_mul_f32 v%d, s56, v%d" % (r0 + 1, r0 + 1))
                        a("v_cvt_pk_bf16_f32 v%d, v%d, v%d" % (t + k, r0, r0 + 1))
                    if not vtype:
                        a("s_add_u32 s54, s53, %d" % ((2 * i + half) * 65536))
                        a("buffer_store_dwordx4 %s, v3, s[24:27], s54 offen offset:%d" % (vr(t, 4), j * 1024))
                    else:
                        a("s_add_u32 s54, s53, %d" % (2 * j * 65536))
                        a("buffer_store_dwordx4 %s, v3, s[24:27], s54 offen offset:%d" % (vr(t, 4), i * 1024 + half * 512))
        if STAMPS: a("s_waitcnt vmcnt(0)")
        stamp_flush(a, 0, 12)
        a("s_endpgm")
    a.label("K1_aux")
    if "noaux" in EXP: a("s_endpgm")
    HOFF = 90112; RS = 1056
    a("s_sub_u32 s36, s35, 24")
    a("s_lshl_b32 s36, s36, 3")
    a("s_add_u32 s36, s36, s34")
    a("v_lshrrev_b32 v3, 3, v1")
    a("v_and_b32 v4, 7, v1")
    a("v_lshlrev_b32 v5, 4, v4")
    a("v_lshl_add_u32 v6, v3, 10, v5")
    a("v_lshlrev_b32 v7, 4, v1")
    a("s_lshl_b32 s37, s36, 15")
    a("s_lshl_b32 s38, s33, 13")
    a("s_add_u32 s37, s37, s38")
    a("s_mul_i32 s38, s36, 88064")
    a("s_mul_i32 s39, s33, 22528")
    a("s_add_u32 s38, s38, s39")
    a("s_waitcnt lgkmcnt(0)")
    srd(a, 16, 4, 2048 * 1024)
    srd(a, 20, 8, 2048 * 2752)
    srd(a, 24, 12, WS_USED)
    srd(a, 28, 10, 1024)
    XR = 32; GR = 64; D0 = 96
    for t in range(8):
        a("buffer_load_dwordx4 %s, v6, s[16:19], s37 offen offset:%d" % (vr(XR + 4 * t, 4), t * 128))
    for t in range(8):
        a("buffer_load_dwordx4 %s, v5, s[28:31], 0 offen offset:%d" % (vr(GR + 4 * t, 4), t * 128))
    for u in range(22):
        if u % 4 == 0:
            a("s_add_u32 m0, s39, %d" % (u * 1024))
            a("s_add_u32 s40, s38, %d" % (u * 1024))
        a("buffer_load_dwordx4 v7, s[20:23], s40 offen offset:%d lds" % ((u % 4) * 1024))
    stamp(a, 1)
    a("v_mov_b32 v8, 0x3f803f80")
    a("v_mov_b32 v10, 0")
    a("v_mov_b32 v11, 0")
    a("v_mov_b32 v12, 0")
    a("v_mov_b32 v13, 0")
    a("s_waitcnt vmcnt(22)")
    stamp(a, 2)
    for i in range(32):
        a("v_dot2c_f32_bf16 v%d, v%d, v8" % (10 + (i & 1), XR + i))
        a("v_dot2c_f32_bf16 v%d, v%d, v%d" % (12 + (i & 1), XR + i, GR + i))
    for i in range(32):
        a("v_lshlrev_b32 v%d, 16, v%d" % (D0 + 2 * i, XR + i))
        a("v_and_b32 v%d, 0xffff0000, v%d" % (D0 + 2 * i + 1, XR + i))
    a("v_add_f32 v10, v10, v11")
    a("v_add_f32 v12, v12, v13")
    def red(regs):
        for pat in ("quad_perm:[1,0,3,2]", "quad_perm:[2,3,0,1]", "row_half_mirror"):
            a("s_nop 1")
            for r in regs:
                a("v_add_f32_dpp v%d, v%d, v%d %s row_mask:0xf bank_mask:0xf" % (r, r, r, pat))
    red([10, 12])
    a("v_mul_f32 v14, %s, v10" % f32(1.0 / 512))
    a("v_mov_b32 v16, 0")
    a("v_mov_b32 v17, 0")
    a("v_mov_b32 v18, 0")
    a("v_mov_b32 v19, 0")
    for i in range(32):
        p = vr(D0 + 2 * i, 2)
        a("v_pk_add_f32 %s, %s, v[14:15] op_sel_hi:[1,0] neg_lo:[0,1] neg_hi:[0,1]" % (p, p))
    for i in range(32):
        p = vr(D0 + 2 * i, 2); ac = vr(16 + 2 * (i & 1), 2)
        a("v_pk_fma_f32 %s, %s, %s, %s" % (ac, p, p, ac))
    a("v_add_f32 v16, v16, v17")
    a("v_add_f32 v18, v18, v19")
    a("v_add_f32 v16, v16, v18")
    red([16])
    a("v_mul_f32 v16, %s, v16" % f32(1.0 / 512))
    a("v_cvt_pk_bf16_f32 v16, v16, v14")
    a("v_cvt_pk_bf16_f32 v12, v12, v12")
    a("v_and_b32 v17, 0xffff0000, v16")
    a("v_lshlrev_b32 v16, 16, v16")
    a("v_lshlrev_b32 v12, 16, v12")
    a("v_add_f32 v16, %s, v16" % f32(1e-5))
    a("v_mul_f32 v12, %s, v12" % f32(-1.4426950408889634))
    a("v_cvt_pk_bf16_f32 v16, v16, v16")
    a("v_exp_f32 v12, v12")
    a("v_lshlrev_b32 v16, 16, v16")
    a("v_sqrt_f32 v16, v16")
    a("v_add_f32 v12, 1.0, v12")
    a("v_cvt_pk_bf16_f32 v16, v16, v16")
    a("v_rcp_f32 v12, v12")
    a("v_lshlrev_b32 v16, 16, v16")
    a("v_rcp_f32 v20, v16")
    a("v_sub_f32 v18, v14, v17")
    a("v_cvt_pk_bf16_f32 v12, v12, v12")
    a("v_mul_f32 v22, v18, v20")
    a("v_lshlrev_b32 v12, 16, v12")
    a("s_lshl_b32 s40, s36, 7")
    a("s_lshl_b32 s41, s33, 5")
    a("s_add_u32 s40, s40, s41")
    a("s_add_u32 s40, s40, %d" % GW)
    a("v_lshlrev_b32 v9, 2, v3")
    a("buffer_store_dword v12, v9, s[24:27], s40 offen")
    a("s_lshl_b32 s41, s33, 3")
    a("v_add_u32 v9, s41, v3")
    a("v_mul_u32_u24 v9, %d, v9" % RS)
    a("v_add_u32 v9, v9, v5")
    a("v_add_u32 v9, %d, v9" % HOFF)
    for t in range(8):
        for k in range(4):
            i = 4 * t + k
            p = vr(D0 + 2 * i, 2)
            a("v_pk_fma_f32 %s, %s, v[20:21], v[22:23] op_sel_hi:[1,0,0]" % (p, p))
        for k in range(4):
            i = 4 * t + k
            a("v_cvt_pk_bf16_f32 v%d, v%d, v%d" % (XR + i, D0 + 2 * i, D0 + 2 * i + 1))
        a("ds_write_b128 v9, %s offset:%d" % (vr(XR + 4 * t, 4), t * 128))
    a("v_bfe_u32 v3, v1, 2, 2")
    a("v_lshrrev_b32 v4, 4, v1")
    a("v_lshl_add_u32 v3, v4, 2, v3")
    a("v_and_b32 v4, 3, v1")
    a("v_lshlrev_b32 v4, 3, v4")
    a("v_mul_u32_u24 v5, %d, v3" % RS)
    a("v_add_u32 v5, v5, v4")
    a("s_lshl_b32 s41, s33, 8")
    a("s_add_u32 s41, s41, %d" % HOFF)
    a("v_add_u32 v5, s41, v5")
    a("v_mul_u32_u24 v6, 2752, v3")
    a("v_add_u32 v6, v6, v4")
    a("s_mul_i32 s41, s33, 96")
    a("v_add_u32 v6, s41, v6")
    stamp(a, 3)
    a("s_waitcnt vmcnt(0) lgkmcnt(0)")
    a("s_barrier")
    stamp(a, 4)
    for d in range(8):
        for rd in range(2):
            a("ds_read_b64_tr_b16 %s, v5 offset:%d" % (vr(32 + 4 * d + 2 * rd, 2), 32 * d + rd * 16 * RS))
    a("s_lshl_b32 s40, s36, 15")
    a("s_lshl_b32 s41, s33, 13")
    a("s_add_u32 s40, s40, s41")
    a("s_add_u32 s40, s40, %d" % HT)
    a("s_add_u32 s41, s40, 4096")
    for d in range(8):
        a("s_waitcnt lgkmcnt(%d)" % (14 - 2 * d))
        a("buffer_store_dwordx4 %s, v7, s[24:27], s%d offen offset:%d" % (vr(32 + 4 * d, 4), 40 + d // 4, (d % 4) * 1024))
    a("s_mul_i32 s40, s36, 3072")
    a("s_mul_i32 s41, s33, 196608")
    a("s_add_u32 s40, s40, s41")
    a("s_add_u32 s40, s40, %d" % W1F)
    a("s_mov_b32 s42, s33")
    a.label("K1_w1loop")
    for sub in range(3):
        for rd in range(2):
            a("ds_read_b64_tr_b16 %s, v6 offset:%d" % (vr(64 + 4 * sub + 2 * rd, 2), 32 * sub + rd * 16 * 2752))
    a("v_add_u32 v6, 384, v6")
    for sub in range(3):
        a("s_waitcnt lgkmcnt(%d)" % (4 - 2 * sub))
        a("buffer_store_dwordx4 %s, v7, s[24:27], s40 offen offset:%d" % (vr(64 + 4 * sub, 4), sub * 1024))
    a("s_add_u32 s40, s40, %d" % (4 * 196608))
    a("s_add_u32 s42, s42, 4")
    a("s_cmp_lt_u32 s42, 29")
    a("s_cbranch_scc1 K1_w1loop")
    if STAMPS: a("s_waitcnt vmcnt(0)")
    stamp_flush(a, 0, 12)
    a.label("K1_end")
    a("s_endpgm")
    return a.text(), 160

def srd_off(a, d, base, soff, nrec, tmp=None):
    a("s_add_u32 s%d, s%d, s%d" % (d, base, soff))
    a("s_addc_u32 s%d, s%d, 0" % (d + 1, base + 1))
    a("s_and_b32 s%d, s%d, 0xffff" % (d + 1, d + 1))
    a("s_mov_b32 s%d, %s" % (d + 2, nrec if isinstance(nrec, str) else "0x%x" % nrec))
    a("s_mov_b32 s%d, 0x00020000" % (d + 3))

GC1 = -2.0 * 0.7978845608028654 * 1.4426950408889634
GC2 = GC1 * 0.044715
NEGBIG = -1.0e30

def gen_k2():
    a = Asm()
    a("s_cmp_ge_u32 s2, 768")
    a("s_cbranch_scc1 K2_end")
    stamp(a, 0)
    a("s_load_dwordx2 s[8:9], s[0:1], 40")
    a("s_load_dwordx2 s[12:13], s[0:1], 88")
    a("v_and_b32 v1, 63, v0")
    a("v_lshrrev_b32 v2, 6, v0")
    a("s_and_b32 s34, s2, 7")
    a("v_readfirstlane_b32 s33, v2")
    a("s_lshr_b32 s35, s2, 3")
    a("v_lshlrev_b32 v2, 4, v1")
    a("s_cmp_ge_u32 s35, 32")
    a("s_cbranch_scc1 K2_attn")
    a("s_lshr_b32 s36, s34, 1")
    a("s_lshr_b32 s37, s35, 2")
    a("s_cmp_eq_u32 s36, 0")
    a("s_cselect_b32 s38, 8, 7")
    a("s_cmp_ge_u32 s37, s38")
    a("s_cbranch_scc1 K2_end")
    a("s_mul_i32 s38, s36, 7")
    a("s_min_u32 s39, s36, 1")
    a("s_add_u32 s38, s38, s39")
    a("s_add_u32 s38, s38, s37")
    a("s_and_b32 s39, s34, 1")
    a("s_lshl_b32 s39, s39, 2")
    a("s_and_b32 s40, s35, 3")
    a("s_add_u32 s39, s39, s40")
    a("s_mul_i32 s40, s38, 196608")
    a("s_mul_i32 s41, s33, 49152")
    a("s_add_u32 s40, s40, s41")
    a("s_add_u32 s40, s40, %d" % W1F)
    a("s_lshl_b32 s41, s33, 19")
    a("s_lshl_b32 s42, s39, 12")
    a("s_add_u32 s41, s41, s42")
    a("s_add_u32 s41, s41, %d" % HT)
    a("s_waitcnt lgkmcnt(0)")
    srd_off(a, 16, 12, 40, 49152)
    srd_off(a, 20, 12, 41, 15 * 32768 + 4096)
    srd(a, 24, 12, WS_USED)
    srd(a, 28, 8, 2752)
    ACC = 8; BUF = 56
    def loads(b):
        r = []
        for i in range(3):
            r.append("buffer_load_dwordx4 %s, v2, s[16:19], s44 offen offset:%d" % (vr(BUF + 28 * b + 4 * i, 4), i * 1024))
        for i in range(4):
            r.append("buffer_load_dwordx4 %s, v2, s[20:23], s45 offen offset:%d" % (vr(BUF + 28 * b + 12 + 4 * i, 4), i * 1024))
        r.append("s_add_u32 s44, s44, 3072")
        r.append("s_add_u32 s45, s45, 32768")
        return r
    a("s_mov_b32 s44, 0")
    a("s_mov_b32 s45, 0")
    for b in range(3):
        for l in loads(b): a(l)
    stamp(a, 1)
    for i in range(48): a("v_mov_b32 v%d, 0" % (ACC + i))
    a("s_mov_b32 s46, 0")
    a.label("K2_mloop")
    for b in range(4):
        a("s_waitcnt vmcnt(14)")
        if b == 0:
            pass
        ld = loads((b + 3) % 4)
        n = 0
        for ai in range(3):
            for bi in range(4):
                acc = vr(ACC + (ai * 4 + bi) * 4, 4)
                a("v_mfma_f32_16x16x32_bf16 %s, %s, %s, %s" % (acc, vr(BUF + 28 * b + 4 * ai, 4), vr(BUF + 28 * b + 12 + 4 * bi, 4), acc))
                if n < len(ld) : a(ld[n]); n += 1
        while n < len(ld): a(ld[n]); n += 1
    a("s_add_u32 s46, s46, 1")
    a("s_cmp_lt_u32 s46, 4")
    a("s_cbranch_scc1 K2_mloop")
    stamp(a, 2)
    a("s_mul_i32 s44, s38, 96")
    a("s_and_b32 s45, s33, 1")
    a("s_lshl_b32 s46, s45, 4")
    a("s_add_u32 s44, s44, s46")
    a("v_lshrrev_b32 v3, 5, v1")
    a("v_lshlrev_b32 v4, 3, v3")
    a("s_waitcnt vmcnt(0)")
    for k in range(3):
        a("buffer_load_dwordx2 %s, v4, s[28:31], s44 offen offset:%d" % (vr(BUF + 2 * k, 2), 32 * k))
    a("v_and_b32 v5, 15, v1")
    a("v_mul_u32_u24 v5, 208, v5")
    a("v_lshrrev_b32 v6, 4, v1")
    a("v_lshl_add_u32 v5, v6, 4, v5")
    a("s_mul_i32 s46, s33, 13312")
    a("v_add_u32 v5, s46, v5")
    a("s_nop 4")
    for ai in range(3):
        for bi in range(4):
            a("ds_write_b128 v5, %s offset:%d" % (vr(ACC + (ai * 4 + bi) * 4, 4), bi * 16 * 208 + ai * 64))
    a("v_and_b32 v5, 31, v1")
    a("s_lshr_b32 s46, s33, 1")
    a("s_lshl_b32 s47, s46, 5")
    a("v_add_u32 v6, s47, v5")
    a("v_mul_u32_u24 v6, 208, v6")
    a("v_lshl_add_u32 v6, v3, 4, v6")
    a("s_lshl_b32 s47, s45, 5")
    a("v_add_u32 v6, s47, v6")
    a("v_lshl_add_u32 v7, v5, 4, v4")
    a("s_mul_i32 s47, s39, 176128")
    a("s_mul_i32 s48, s38, 6144")
    a("s_add_u32 s47, s47, s48")
    a("s_lshl_b32 s48, s46, 10")
    a("s_add_u32 s47, s47, s48")
    a("s_lshl_b32 s48, s45, 9")
    a("s_add_u32 s47, s47, s48")
    a("s_add_u32 s47, s47, %d" % UF)
    a("s_mov_b32 s48, %s" % f32(GC2))
    a("s_mov_b32 s49, %s" % f32(GC1))
    a("s_waitcnt lgkmcnt(0)")
    a("s_barrier")
    R = 64
    for k in range(3):
        for wv in range(4):
            a("ds_read_b128 %s, v6 offset:%d" % (vr(R + 16 * k + 4 * wv, 4), wv * 13312 + k * 64))
    for k in range(3):
        r = R + 16 * k
        a("s_waitcnt vmcnt(%d) lgkmcnt(%d)" % (0 if k == 0 else k - 0, 8 - 4 * k) if False else "s_waitcnt lgkmcnt(%d)" % (8 - 4 * k))
        if k == 0: a("s_waitcnt vmcnt(0)")
        a("v_pk_add_f32 %s, %s, %s" % (vr(r, 2), vr(r, 2), vr(r + 4, 2)))
        a("v_pk_add_f32 %s, %s, %s" % (vr(r + 2, 2), vr(r + 2, 2), vr(r + 6, 2)))
        a("v_pk_add_f32 %s, %s, %s" % (vr(r + 8, 2), vr(r + 8, 2), vr(r + 12, 2)))
        a("v_pk_add_f32 %s, %s, %s" % (vr(r + 10, 2), vr(r + 10, 2), vr(r + 14, 2)))
        a("v_pk_add_f32 %s, %s, %s" % (vr(r, 2), vr(r, 2), vr(r + 8, 2)))
        a("v_pk_add_f32 %s, %s, %s" % (vr(r + 2, 2), vr(r + 2, 2), vr(r + 10, 2)))
        a("v_cvt_pk_bf16_f32 v%d, v%d, v%d" % (r + 4, r, r + 1))
        a("v_cvt_pk_bf16_f32 v%d, v%d, v%d" % (r + 5, r + 2, r + 3))
        for j in range(2):
            a("v_lshlrev_b32 v%d, 16, v%d" % (r + 2 * j, r + 4 + j))
            a("v_and_b32 v%d, 0xffff0000, v%d" % (r + 2 * j + 1, r + 4 + j))
            a("v_lshlrev_b32 v%d, 16, v%d" % (r + 8 + 2 * j, BUF + 2 * k + j))
            a("v_and_b32 v%d, 0xffff0000, v%d" % (r + 8 + 2 * j + 1, BUF + 2 * k + j))
        a("v_pk_add_f32 %s, %s, %s" % (vr(r, 2), vr(r, 2), vr(r + 8, 2)))
        a("v_pk_add_f32 %s, %s, %s" % (vr(r + 2, 2), vr(r + 2, 2), vr(r + 10, 2)))
        a("v_cvt_pk_bf16_f32 v%d, v%d, v%d" % (r + 4, r, r + 1))
        a("v_cvt_pk_bf16_f32 v%d, v%d, v%d" % (r + 5, r + 2, r + 3))
        for j in range(2):
            a("v_lshlrev_b32 v%d, 16, v%d" % (r + 2 * j, r + 4 + j))
            a("v_and_b32 v%d, 0xffff0000, v%d" % (r + 2 * j + 1, r + 4 + j))
        for j in range(4): a("v_mul_f32 v%d, v%d, v%d" % (r + 8 + j, r + j, r + j))
        for j in range(4): a("v_mov_b32 v%d, s49" % (r + 12 + j))
        for j in range(4): a("v_fmac_f32 v%d, s48, v%d" % (r + 12 + j, r + 8 + j))
        for j in range(4): a("v_mul_f32 v%d, v%d, v%d" % (r + 8 + j, r + j, r + 12 + j))
        for j in range(4): a("v_exp_f32 v%d, v%d" % (r + 8 + j, r + 8 + j))
        for j in range(4): a("v_add_f32 v%d, 1.0, v%d" % (r + 8 + j, r + 8 + j))
        for j in range(4): a("v_rcp_f32 v%d, v%d" % (r + 8 + j, r + 8 + j))
        for j in range(4): a("v_mul_f32 v%d, v%d, v%d" % (r + j, r + j, r + 8 + j))
        a("v_cvt_pk_bf16_f32 v%d, v%d, v%d" % (r + 4, r, r + 1))
        a("v_cvt_pk_bf16_f32 v%d, v%d, v%d" % (r + 5, r + 2, r + 3))
        if k == 2:
            a("s_cmp_eq_u32 s38, 28")
            a("s_cbranch_scc1 K2_mdone")
        a("buffer_store_dwordx2 %s, v7, s[24:27], s47 offen offset:%d" % (vr(r + 4, 2), k * 2048 if k < 2 else 0) if k < 2 else
          "s_add_u32 s47, s47, 4096\nbuffer_store_dwordx2 %s, v7, s[24:27], s47 offen" % vr(r + 4, 2))
    a.label("K2_mdone")
    stamp(a, 3); stamp(a, 4)
    if STAMPS: a("s_waitcnt vmcnt(0)")
    stamp_flush(a, 1, 12)
    a("s_endpgm")
    a.label("K2_attn")
    a("s_sub_u32 s35, s35, 32")
    a("s_and_b32 s36, s34, 1")
    a("s_lshl_b32 s36, s36, 4")
    a("s_and_b32 s37, s35, 15")
    a("s_add_u32 s36, s36, s37")
    a("s_lshr_b32 s37, s34, 1")
    a("s_lshl_b32 s37, s37, 2")
    a("s_lshr_b32 s38, s35, 4")
    a("s_add_u32 s37, s37, s38")
    a("s_lshl_b32 s38, s36, 16")
    a("s_add_u32 s39, s38, %d" % KF)
    a("s_add_u32 s40, s38, %d" % VF)
    a("s_lshl_b32 s41, s37, 2")
    a("s_add_u32 s41, s41, s33")
    a("s_lshl_b32 s42, s41, 10")
    a("s_add_u32 s42, s42, s38")
    a("s_mul_i32 s43, s33, 3")
    a("s_lshl_b32 s44, s37, 2")
    a("s_add_u32 s44, s44, s43")
    a("s_sub_u32 s44, s44, 8")
    a("v_lshrrev_b32 v3, 5, v1")
    a("v_lshlrev_b32 v160, 9, v3")
    a("v_and_b32 v161, 15, v1")
    a("v_lshlrev_b32 v161, 4, v161")
    a("v_lshl_add_u32 v161, v3, 8, v161")
    a("s_waitcnt lgkmcnt(0)")
    srd_off(a, 16, 12, 39, 65536)
    srd_off(a, 20, 12, 40, 65536)
    srd(a, 24, 12, WS_USED)
    a("buffer_load_dwordx4 v[4:7], v2, s[24:27], s42 offen")
    a("s_mul_i32 s45, s33, 3072")
    a("s_mul_i32 s46, s33, 6144")
    a("s_add_u32 s46, s46, 12288")
    a("s_mov_b32 s52, 0x0000ffff")
    a("s_mov_b32 s53, 0x0000ffff")
    a("s_mov_b32 s54, 0xffff0000")
    a("s_mov_b32 s55, 0xffff0000")
    a("v_add_u32 v163, s46, v2")
    for u in range(3):
        a("s_add_u32 s47, s44, %d" % u)
        a("s_cmp_lt_i32 s47, 0")
        a("s_cselect_b64 s[48:49], -1, 0")
        a("s_lshl_b32 s50, s47, 10")
        a("s_cmp_lt_i32 s47, 0")
        a("s_cselect_b32 s51, 0, s50")
        a("s_cselect_b32 s50, 0x40000000, s50")
        a("s_cselect_b32 s56, 0, 0x3f803f80")
        a("v_cndmask_b32 v162, v2, v160, s[48:49]")
        a("s_add_u32 m0, s45, %d" % (u * 1024))
        a("v_mov_b32 v164, s56")
        a("buffer_load_dwordx4 v162, s[16:19], s51 offen lds")
        a("v_mov_b32 v165, s56")
        a("v_mov_b32 v166, s56")
        a("v_mov_b32 v167, s56")
        a("s_mov_b64 exec, s[52:53]")
        a("s_add_u32 m0, s46, %d" % (u * 2048))
        a("s_add_u32 s57, s50, 512")
        a("buffer_load_dwordx4 v161, s[20:23], s50 offen lds")
        a("s_add_u32 m0, s46, %d" % (u * 2048 + 1024))
        a("s_nop 0")
        a("buffer_load_dwordx4 v161, s[20:23], s57 offen lds")
        a("s_mov_b64 exec, s[54:55]")
        a("ds_write_b128 v163, v[164:167] offset:%d" % (u * 2048))
        a("ds_write_b128 v163, v[164:167] offset:%d" % (u * 2048 + 1024))
        a("s_mov_b64 exec, -1")
    stamp(a, 1)
    KB = 8; VB = 20; PB = 36; SB = 48; COLD = 96; CDIAG = 112; CN = 128; OA = 144
    a("v_and_b32 v160, 31, v1")
    a("v_lshlrev_b32 v161, 2, v3")
    a("v_sub_u32 v160, v160, v161")
    a("v_mov_b32 v161, %s" % f32(NEGBIG))
    a("v_mov_b32 v162, 0")
    for i0 in range(0, 16, 4):
        for i in range(i0, i0 + 4):
            a("v_cmp_le_i32 s[%d:%d], %d, v160" % (56 + 2 * (i - i0), 57 + 2 * (i - i0), 8 * (i // 4) + i % 4))
        for i in range(i0, i0 + 4):
            m = "s[%d:%d]" % (56 + 2 * (i - i0), 57 + 2 * (i - i0))
            a("v_cndmask_b32 v%d, v161, v162, %s" % (CDIAG + i, m))
            a("v_cndmask_b32 v%d, v162, v161, %s" % (COLD + i, m))
    for i in range(16): a("v_mov_b32 v%d, 0" % (OA + i))
    a("s_lshl_b32 s45, s33, 10")
    a("v_add_u32 v160, s45, v2")
    a("s_lshl_b32 s45, s33, 11")
    a("s_add_u32 s45, s45, 12288")
    a("v_add_u32 v161, s45, v2")
    a("v_mov_b32 v162, %s" % f32(NEGBIG))
    a("v_mov_b32 v163, %s" % f32(NEGBIG))
    a("s_waitcnt vmcnt(0) lgkmcnt(0)")
    a("s_barrier")
    stamp(a, 2)
    kread = lambda p: "ds_read_b128 %s, v160 offset:%d" % (vr(KB + 4 * (p % 3), 4), p * 1024)
    S = lambda i: SB + 16 * i
    def maxops(sb):
        for i in range(0, 16, 2):
            m = 162 + ((i // 2) & 1)
            a("v_max3_f32 v%d, v%d, v%d, v%d" % (m, m, sb + i, sb + i + 1))
    for p in range(3): a(kread(p))
    for p in range(9):
        a("s_waitcnt lgkmcnt(%d)" % min(2, 8 - p))
        c = vr(COLD, 16) if p == 0 else (vr(CDIAG, 16) if p == 8 else "0")
        a("v_mfma_f32_32x32x16_bf16 %s, %s, v[4:7], %s" % (vr(S(p % 3), 16), vr(KB + 4 * (p % 3), 4), c))
        if p + 3 < 9: a(kread(p + 3))
        if p >= 1:
            a("s_nop 7" if p == 1 else "s_nop 1")
            maxops(S((p - 1) % 3))
    for p in range(3): a(kread(p))
    a("s_nop 7")
    maxops(S(8 % 3))
    a("v_max_f32 v162, v162, v163")
    a("v_mov_b32 v163, v162")
    a("s_nop 1")
    a("v_permlane32_swap_b32 v162, v163")
    a("v_max_f32 v162, v162, v163")
    for i in range(16):
        a("v_sub_f32 v%d, v%d, v162" % (COLD + i, COLD + i))
    for i in range(16):
        a("v_sub_f32 v%d, 0, v162" % (CN + i))
    for i in range(16):
        a("v_sub_f32 v%d, v%d, v162" % (CDIAG + i, CDIAG + i))
    stamp(a, 3)
    def vread(p):
        return ["ds_read_b128 %s, v161 offset:%d" % (vr(VB + 8 * (p % 2) + 4 * i, 4), p * 2048 + i * 1024) for i in range(2)]
    def smfma(p):
        c = vr(COLD, 16) if p == 0 else (vr(CDIAG, 16) if p == 8 else vr(CN, 16))
        a("v_mfma_f32_32x32x16_bf16 %s, %s, v[4:7], %s" % (vr(S(p % 2), 16), vr(KB + 4 * (p % 3), 4), c))
    for r in vread(0): a(r)
    a("s_waitcnt lgkmcnt(4)")
    smfma(0)
    a(kread(3))
    for p in range(9):
        if p + 1 < 9:
            a("s_waitcnt lgkmcnt(0)") if False else None
        q = []
        if p + 1 < 9:
            a("s_waitcnt lgkmcnt(%d)" % P2_WAIT_K[p])
            smfma(p + 1)
            for r in vread(p + 1): a(r)
            if p + 4 < 9: a(kread(p + 4))
            if p == 0: a("s_nop 7")
        else:
            a("s_nop 7")
        sb = S(p % 2)
        for i in range(16): a("v_exp_f32 v%d, v%d" % (sb + i, sb + i))
        for i in range(8): a("v_cvt_pk_bf16_f32 v%d, v%d, v%d" % (PB + i, sb + 2 * i, sb + 2 * i + 1))
        a("s_waitcnt lgkmcnt(%d)" % P2_WAIT_V[p])
        a("s_nop 0")
        for i in range(2):
            a("v_mfma_f32_32x32x16_bf16 %s, %s, %s, %s" % (vr(OA, 16), vr(VB + 8 * (p % 2) + 4 * i, 4), vr(PB + 4 * i, 4), vr(OA, 16)))
    a("s_lshr_b32 s45, s41, 1")
    a("s_lshl_b32 s45, s45, 16")
    a("s_lshl_b32 s46, s36, 11")
    a("s_add_u32 s45, s45, s46")
    a("s_and_b32 s46, s41, 1")
    a("s_lshl_b32 s46, s46, 10")
    a("s_add_u32 s45, s45, s46")
    a("s_add_u32 s45, s45, %d" % OF)
    a("s_nop 7")
    a("s_nop 3")
    a("v_rcp_f32 v162, v%d" % (OA + 8))
    a("s_nop 0")
    for i in range(8): a("v_mul_f32 v%d, v%d, v162" % (OA + i, OA + i))
    for i in range(4): a("v_cvt_pk_bf16_f32 v%d, v%d, v%d" % (PB + i, OA + 2 * i, OA + 2 * i + 1))
    a("buffer_store_dwordx4 %s, v2, s[24:27], s45 offen" % vr(PB, 4))
    stamp(a, 4)
    if STAMPS: a("s_waitcnt vmcnt(0)")
    stamp_flush(a, 1, 12)
    a.label("K2_end")
    a("s_endpgm")
    return a.text(), 168

def _p2_waits():
    q = ["K0", "K1", "K2", "V0a", "V0b"]
    q.append("K3")
    wk, wv = [], []
    def need(name):
        i = q.index(name)
        return len(q) - 1 - i
    for p in range(9):
        if p + 1 < 9:
            wk.append(need("K%d" % (p + 1)))
            q.extend(["V%da" % (p + 1), "V%db" % (p + 1)])
            if p + 4 < 9: q.append("K%d" % (p + 4))
        wv.append(need("V%db" % p))
    return wk, wv
P2_WAIT_K, P2_WAIT_V = _p2_waits()

def gen_k3():
    a = Asm()
    a("s_cmp_ge_u32 s2, 256")
    a("s_cbranch_scc1 K3_end")
    stamp(a, 0)
    a("s_load_dwordx2 s[4:5], s[0:1], 16")
    a("s_load_dwordx4 s[8:11], s[0:1], 48")
    a("s_load_dwordx2 s[14:15], s[0:1], 72")
    a("s_load_dwordx2 s[12:13], s[0:1], 88")
    a("v_and_b32 v1, 63, v0")
    a("v_lshrrev_b32 v2, 6, v0")
    a("s_and_b32 s34, s2, 7")
    a("v_readfirstlane_b32 s33, v2")
    a("s_lshr_b32 s35, s2, 3")
    a("v_lshlrev_b32 v2, 4, v1")
    a("s_lshr_b32 s36, s34, 1")
    a("s_lshl_b32 s36, s36, 3")
    a("s_lshr_b32 s37, s35, 2")
    a("s_add_u32 s36, s36, s37")
    a("s_and_b32 s37, s34, 1")
    a("s_lshl_b32 s37, s37, 2")
    a("s_and_b32 s38, s35, 3")
    a("s_add_u32 s37, s37, s38")
    a("v_lshrrev_b32 v3, 3, v1")
    a("v_bfe_u32 v4, v1, 4, 1")
    a("v_lshlrev_b32 v4, 2, v4")
    a("v_and_b32 v5, 7, v1")
    a("v_xor_b32 v4, v4, v5")
    a("v_lshlrev_b32 v4, 4, v4")
    a("v_bfe_u32 v6, v1, 2, 2")
    a("v_lshlrev_b32 v6, 7, v6")
    a("v_bfe_u32 v7, v1, 3, 1")
    a("v_lshl_add_u32 v6, v7, 6, v6")
    a("v_bfe_u32 v7, v1, 4, 1")
    a("v_lshl_add_u32 v6, v7, 5, v6")
    a("v_and_b32 v7, 3, v1")
    a("v_lshl_add_u32 v6, v7, 3, v6")
    a("s_lshl_b32 s40, s33, 14")
    a("v_add_u32 v6, s40, v6")
    a("v_lshrrev_b32 v7, 5, v1")
    ACC = 16; BUF = 80; WF = 144
    for i in range(64): a("v_mov_b32 v%d, 0" % (ACC + i))
    a("s_cmp_eq_u32 s33, 0")
    a("s_cbranch_scc0 K3_mlp2")
    NR = 8
    for role in (0, 1):
        if role == 0:
            a("v_lshl_add_u32 v8, v3, 10, v4")
            a("v_lshl_add_u32 v10, v7, 9, v6")
            RDS = 1024; RSTR = 1024
            a("s_lshl_b32 s41, s37, 7")
            a("s_lshl_b32 s42, s36, 16")
            a("s_add_u32 s42, s42, %d" % OF)
            a("s_waitcnt lgkmcnt(0)")
            srd_off(a, 16, 4, 41, 512 * 1024 - 128 * 7)
            a("s_sub_u32 s18, %d, s41" % (512 * 1024))
            srd_off(a, 20, 12, 42, 32 * 2048)
        else:
            a.label("K3_mlp2")
            a("v_lshl_add_u32 v8, v3, 12, v4")
            a("v_lshl_add_u32 v10, v7, 10, v6")
            RDS = 512; RSTR = 4096
            a("s_sub_u32 s43, s33, 1")
            a("s_mul_i32 s43, s43, 29")
            a("s_cmp_eq_u32 s33, 3")
            a("s_cselect_b32 s44, 28, 29")
            a("s_lshl_b32 s41, s43, 16")
            a("s_lshl_b32 s45, s36, 7")
            a("s_add_u32 s41, s41, s45")
            a("s_mul_i32 s42, s37, 176128")
            a("s_lshl_b32 s46, s43, 11")
            a("s_add_u32 s42, s42, s46")
            a("s_add_u32 s42, s42, %d" % UF)
            a("s_lshl_b32 s46, s44, 16")
            a("s_sub_u32 s46, s46, s45")
            a("s_lshl_b32 s47, s44, 11")
            a("s_waitcnt lgkmcnt(0)")
            srd_off(a, 16, 8, 41, "s46")
            srd_off(a, 20, 12, 42, "s47")
        a("v_xor_b32 v11, 64, v10")
        def loads(b):
            r = []
            r.append("s_add_u32 m0, s40, %d" % (b * 2048))
            r.append("s_add_u32 s50, s48, %d" % (8 * RSTR))
            r.append("buffer_load_dwordx4 v8, s[16:19], s48 offen lds")
            r.append("s_add_u32 m0, s40, %d" % (b * 2048 + 1024))
            r.append("buffer_load_dwordx4 %s, v2, s[20:23], s49 offen" % vr(BUF + 8 * b, 4))
            r.append("buffer_load_dwordx4 v8, s[16:19], s50 offen lds")
            r.append("buffer_load_dwordx4 %s, v2, s[20:23], s49 offen offset:1024" % vr(BUF + 8 * b + 4, 4))
            r.append("s_add_u32 s48, s48, %d" % (16 * RSTR))
            r.append("s_add_u32 s49, s49, 2048")
            return r
        def trreads(b):
            r = []
            for mt in range(2):
                for rd in range(2):
                    r.append("ds_read_b64_tr_b16 %s, v%d offset:%d" % (vr(WF + 8 * (b & 1) + 4 * mt + 2 * rd, 2), 10 + mt, b * 2048 + rd * RDS))
            return r
        a("s_mov_b32 s48, 0")
        a("s_mov_b32 s49, 0")
        for b in range(NR - 1):
            for l in loads(b): a(l)
        if role == 0: stamp(a, 1)
        a("s_mov_b32 s51, 0")
        a("s_waitcnt vmcnt(%d)" % (4 * (NR - 2)))
        for r in trreads(0): a(r)
        L = "K3_loop%d" % role
        a.label(L)
        for b in range(NR):
            nb = (b + 1) % NR
            a("s_waitcnt vmcnt(%d)" % (4 * (NR - 3)))
            for r in trreads(nb): a(r)
            a("s_waitcnt lgkmcnt(4)")
            ld = loads((b + NR - 1) % NR)
            n = 0
            for i in range(2):
                for j in range(2):
                    acc = vr(ACC + (i * 2 + j) * 16, 16)
                    wf = lambda t: vr(WF + 8 * (b & 1) + 4 * t, 4)
                    af = lambda t: vr(BUF + 8 * b + 4 * t, 4)
                    if role == 0: a("v_mfma_f32_32x32x16_bf16 %s, %s, %s, %s" % (acc, wf(i), af(j), acc))
                    else: a("v_mfma_f32_32x32x16_bf16 %s, %s, %s, %s" % (acc, af(i), wf(j), acc))
                    for _ in range(3):
                        if n < len(ld): a(ld[n]); n += 1
        a("s_add_u32 s51, s51, 1")
        a("s_cmp_lt_u32 s51, 4")
        a("s_cbranch_scc1 %s" % L)
        if role == 0: a("s_branch K3_red")
    a.label("K3_red")
    stamp(a, 2)
    srd(a, 24, 12, WS_USED)
    srd(a, 28, 10, 4096)
    srd(a, 44, 14, 2048 * 1024)
    a("s_lshl_b32 s52, s36, 6")
    a("s_lshl_b32 s53, s33, 4")
    a("s_add_u32 s52, s52, s53")
    a("s_lshl_b32 s53, s52, 2")
    a("s_add_u32 s53, s53, %d" % GW)
    a("s_lshl_b32 s54, s52, 1")
    a("v_lshlrev_b32 v4, 2, v3")
    a("v_lshlrev_b32 v5, 1, v3")
    a("s_waitcnt vmcnt(0) lgkmcnt(0)")
    a("buffer_load_dword v144, v4, s[24:27], s53 offen")
    a("buffer_load_dword v145, v4, s[24:27], s53 offen offset:32")
    a("buffer_load_ushort v146, v5, s[28:31], s54 offen")
    a("buffer_load_ushort v147, v5, s[28:31], s54 offen offset:16")
    a("s_barrier")
    RST = 272; WB = 64 * RST
    a("v_and_b32 v6, 31, v1")
    a("v_mul_u32_u24 v6, %d, v6" % RST)
    a("v_lshl_add_u32 v6, v7, 4, v6")
    a("s_mul_i32 s55, s33, %d" % WB)
    a("v_add_u32 v6, s55, v6")
    for i in range(2):
        for j in range(2):
            for g in range(4):
                a("ds_write_b128 v6, %s offset:%d" % (vr(ACC + (i * 2 + j) * 16 + 4 * g, 4), j * 32 * RST + i * 128 + g * 32))
    a("s_lshl_b32 s55, s33, 4")
    a("v_add_u32 v6, s55, v3")
    a("v_mul_u32_u24 v6, %d, v6" % RST)
    a("v_and_b32 v8, 7, v1")
    a("v_lshl_add_u32 v6, v8, 5, v6")
    a("v_lshlrev_b32 v8, 4, v8")
    a("v_lshl_add_u32 v8, v3, 10, v8")
    a("s_lshl_b32 s55, s52, 10")
    a("s_lshl_b32 s56, s37, 7")
    a("s_add_u32 s55, s55, s56")
    a("s_add_u32 s56, s55, 8192")
    a("s_waitcnt lgkmcnt(0)")
    a("s_barrier")
    R = 16
    for ps in range(2):
        for wv in range(4):
            for hh in range(2):
                a("ds_read_b128 %s, v6 offset:%d" % (vr(R + 32 * ps + 8 * wv + 4 * hh, 4), wv * WB + ps * 8 * RST + hh * 16))
    for ps in range(2):
        r = R + 32 * ps
        a("s_waitcnt lgkmcnt(%d)" % (8 - 8 * ps))
        if ps == 0: a("s_waitcnt vmcnt(0)")
        g = 144 + ps; b2 = 146 + ps
        for k in range(4):
            a("v_pk_add_f32 %s, %s, %s" % (vr(r + 8 + 2 * k, 2), vr(r + 8 + 2 * k, 2), vr(r + 16 + 2 * k, 2)))
        for k in range(4):
            a("v_pk_add_f32 %s, %s, %s" % (vr(r + 8 + 2 * k, 2), vr(r + 8 + 2 * k, 2), vr(r + 24 + 2 * k, 2)))
        a("v_lshlrev_b32 v%d, 16, v%d" % (b2, b2))
        a("v_sub_f32 v150, 1.0, v%d" % g)
        a("v_cvt_pk_bf16_f32 v150, v150, v150")
        a("v_lshlrev_b32 v150, 16, v150")
        a("v_mov_b32 v152, v%d" % g)
        a("v_mov_b32 v154, v%d" % b2)
        def rnd(base, tmp):
            for k in range(4): a("v_cvt_pk_bf16_f32 v%d, v%d, v%d" % (tmp + k, base + 2 * k, base + 2 * k + 1))
            for k in range(4):
                a("v_lshlrev_b32 v%d, 16, v%d" % (base + 2 * k, tmp + k))
                a("v_and_b32 v%d, 0xffff0000, v%d" % (base + 2 * k + 1, tmp + k))
        rnd(r, r + 16); rnd(r + 8, r + 20)
        for k in range(4):
            a("v_pk_add_f32 %s, %s, v[154:155] op_sel_hi:[1,0]" % (vr(r + 8 + 2 * k, 2), vr(r + 8 + 2 * k, 2)))
        for k in range(4):
            a("v_pk_mul_f32 %s, %s, v[152:153] op_sel_hi:[1,0]" % (vr(r + 2 * k, 2), vr(r + 2 * k, 2)))
        rnd(r + 8, r + 20); rnd(r, r + 16)
        for k in range(4):
            a("v_pk_mul_f32 %s, %s, v[150:151] op_sel_hi:[1,0]" % (vr(r + 8 + 2 * k, 2), vr(r + 8 + 2 * k, 2)))
        rnd(r + 8, r + 20)
        for k in range(4):
            a("v_pk_add_f32 %s, %s, %s" % (vr(r + 2 * k, 2), vr(r + 2 * k, 2), vr(r + 8 + 2 * k, 2)))
        for k in range(4): a("v_cvt_pk_bf16_f32 v%d, v%d, v%d" % (r + 16 + k, r + 2 * k, r + 2 * k + 1))
        a("buffer_store_dwordx4 %s, v8, s[44:47], s%d offen" % (vr(r + 16, 4), 55 + ps))
    stamp(a, 3); stamp(a, 4)
    if STAMPS: a("s_waitcnt vmcnt(0)")
    stamp_flush(a, 2, 12)
    a.label("K3_end")
    a("s_endpgm")
    return a.text(), 160

HEADER = open("gated_mix__sliding_block__mixer_token_mlp__prompt.s.ref").read().split("; Override launch")[0]

def build(kernels):
    s = HEADER
    for name, grid, block, lds, _ in kernels:
        s += "; @launch kernel=%s grid=(%d,1,1) block=(%d,1,1) lds=%d\n" % (name, grid, block, lds)
    s += '.amdgcn_target "amdgcn-amd-amdhsa--gfx950"\n.text\n'
    descs = ""
    for name, grid, block, lds, fn in kernels:
        body, vg = fn()
        s += kernel_header(name) + body
        descs += kernel_desc(name, vg)
    s += '.section .rodata,"a"\n' + descs
    return s

if __name__ == "__main__":
    ks = [("k1_kernel", 256, 256, 131072, gen_k1), ("k2_kernel", 768, 256, 53248, gen_k2), ("k3_kernel", 256, 256, 69632, gen_k3)]
    out = sys.argv[1] if len(sys.argv) > 1 else "out.s"
    if len(sys.argv) > 2 and sys.argv[2] == "stamps": STAMPS = True
    open(out, "w").write(build(ks))
```

```python
import sys, struct, os
from asmlib import *

QF = 0
KF = 2 << 20
VF = 4 << 20
HT = 6 << 20
W1O = 8 << 20
GW = 14 << 20
OF = 15 << 20
UF = 17 << 20
WS_USED = 19 << 20
BIG = 0x40000000

STAMPS = False
EXP = set(os.environ.get("EXP", "").split(","))
AUXPOL = os.environ.get("AUXPOL", "")
QKVPOL = os.environ.get("QKVPOL", "")
K2POL = os.environ.get("K2POL", "")
PRIO = os.environ.get("PRIO", "")
TS = 24 << 20
def f32(x): return "0x%08x" % struct.unpack("<I", struct.pack("<f", x))[0]
QSCALE = 0.25 * 1.4426950408889634
GC1 = -2.0 * 0.7978845608028654 * 1.4426950408889634
GC2 = GC1 * 0.044715
NEGBIG = -1.0e30

def stamp(a, n):
    if STAMPS: a("s_memrealtime s[%d:%d]" % (70 + 2 * n, 71 + 2 * n))
def stamp_flush(a, kidx, wsptr, nst=6):
    if not STAMPS: return
    a("s_waitcnt vmcnt(0)")
    stamp(a, nst - 1)
    a("s_memtime s[92:93]")
    a("s_mov_b32 s84, s%d" % wsptr)
    a("s_and_b32 s85, s%d, 0xffff" % (wsptr + 1))
    a("s_mov_b32 s86, 0x%x" % (32 << 20))
    a("s_mov_b32 s87, 0x00020000")
    a("v_lshrrev_b32 v0, 6, v0")
    a("s_lshl_b32 s88, s2, 4")
    a("v_add_u32 v0, s88, v0")
    a("v_lshlrev_b32 v0, 5, v0")
    a("s_waitcnt lgkmcnt(0)")
    a("s_mov_b32 s88, %d" % (TS + (kidx << 20)))
    for i in range(nst):
        a("v_mov_b32 v1, s%d" % (70 + 2 * i))
        a("buffer_store_dword v1, v0, s[84:87], s88 offen offset:%d" % (4 * i))
        a("s_nop 1")
    a("s_sub_u32 s92, s92, s90")
    a("v_mov_b32 v1, s92")
    a("buffer_store_dword v1, v0, s[84:87], s88 offen offset:24")
def stamps_init(a):
    if STAMPS:
        for i in range(1, 5): a("s_mov_b64 s[%d:%d], 0" % (70 + 2 * i, 71 + 2 * i))
        stamp(a, 0)
        a("s_memtime s[90:91]")

def srd(a, d, base, nrec):
    a("s_mov_b32 s%d, s%d" % (d, base))
    a("s_and_b32 s%d, s%d, 0xffff" % (d + 1, base + 1))
    a("s_mov_b32 s%d, %s" % (d + 2, nrec if isinstance(nrec, str) else "0x%x" % nrec))
    a("s_mov_b32 s%d, 0x00020000" % (d + 3))
def srd_off(a, d, base, soff, nrec):
    a("s_add_u32 s%d, s%d, s%d" % (d, base, soff))
    a("s_addc_u32 s%d, s%d, 0" % (d + 1, base + 1))
    a("s_and_b32 s%d, s%d, 0xffff" % (d + 1, d + 1))
    a("s_mov_b32 s%d, %s" % (d + 2, nrec if isinstance(nrec, str) else "0x%x" % nrec))
    a("s_mov_b32 s%d, 0x00020000" % (d + 3))

K1W = 5 * 16384
def gen_k1():
    a = Asm()
    a("s_cmp_ge_u32 s2, 256")
    a("s_cbranch_scc1 K1_end")
    stamps_init(a)
    a("s_load_dwordx4 s[4:7], s[0:1], 0")
    a("s_load_dwordx2 s[8:9], s[0:1], 32")
    a("s_load_dwordx2 s[10:11], s[0:1], 64")
    a("s_load_dwordx2 s[12:13], s[0:1], 88")
    a("v_and_b32 v1, 63, v0")
    a("v_lshrrev_b32 v2, 6, v0")
    a("s_and_b32 s34, s2, 7")
    a("v_readfirstlane_b32 s33, v2")
    a("s_lshr_b32 s35, s2, 3")
    a("s_cmp_ge_u32 s35, 24")
    a("s_cbranch_scc1 K1_aux")
    a("s_mul_i32 s36, s35, 43")
    a("s_lshr_b32 s36, s36, 8")
    a("s_mul_i32 s37, s36, 6")
    a("s_sub_u32 s37, s35, s37")
    a("s_lshr_b32 s38, s34, 1")
    a("s_lshl_b32 s38, s38, 2")
    a("s_add_u32 s38, s38, s36")
    a("s_lshr_b32 s39, s37, 1")
    a("s_and_b32 s40, s34, 1")
    a("s_lshl_b32 s40, s40, 1")
    a("s_and_b32 s41, s37, 1")
    a("s_add_u32 s40, s40, s41")
    a("s_cmp_lt_u32 s33, 4")
    a("s_cbranch_scc1 K1_cons")
    a("s_sub_u32 s33, s33, 4")
    a("s_lshl_b32 s41, s39, 9")
    a("s_lshl_b32 s42, s40, 7")
    a("s_add_u32 s41, s41, s42")
    a("s_and_b32 s42, s33, 1")
    a("s_lshl_b32 s42, s42, 2")
    a("v_lshrrev_b32 v3, 4, v1")
    a("v_add_u32 v4, s42, v3")
    a("v_and_b32 v5, 7, v1")
    a("v_xor_b32 v4, v4, v5")
    a("v_lshrrev_b32 v5, 3, v1")
    a("v_lshlrev_b32 v5, 10, v5")
    a("v_lshl_add_u32 v10, v4, 4, v5")
    a("v_lshlrev_b32 v4, 2, v3")
    a("v_and_b32 v5, 15, v1")
    a("v_xor_b32 v4, v4, v5")
    a("v_mul_u32_u24 v5, 3072, v3")
    a("v_lshl_add_u32 v11, v4, 4, v5")
    a("s_lshl_b32 s46, s38, 7")
    a("s_lshl_b32 s44, s33, 3")
    a("s_add_u32 s46, s46, s44")
    a("s_lshl_b32 s46, s46, 10")
    a("s_mul_i32 s47, s33, 12288")
    a("s_lshl_b32 s45, s41, 1")
    a("s_add_u32 s47, s47, s45")
    a("s_lshl_b32 s48, s33, 10")
    if "norot1" in EXP:
        a("s_mov_b32 s57, 0")
    else:
        a("s_lshl_b32 s57, s36, 1")
        a("s_add_u32 s57, s57, s37")
        a("s_and_b32 s57, s57, 7")
    a("s_waitcnt lgkmcnt(0)")
    srd(a, 16, 4, 2048 * 1024)
    srd(a, 20, 6, 512 * 3072)
    stamp(a, 1)
    def issue():
        a("s_lshl_b32 s58, s57, 7")
        a("s_add_u32 s58, s58, s46")
        a("s_mul_i32 s59, s57, 196608")
        a("s_add_u32 s59, s59, s47")
        for u in range(4):
            a("s_add_u32 m0, s48, %d" % (u * 4096))
            a("s_add_u32 s50, s58, %d" % (u * 32768))
            a("buffer_load_dwordx4 v10, s[16:19], s50 offen lds")
            a("s_add_u32 m0, s48, %d" % (K1W + u * 4096))
            a("s_add_u32 s50, s59, %d" % (u * 49152))
            a("buffer_load_dwordx4 v11, s[20:23], s50 offen lds")
        a("s_add_u32 s57, s57, 1")
        a("s_and_b32 s57, s57, 7")
        a("s_add_u32 s48, s48, 16384")
        a("s_cmp_ge_u32 s48, %d" % K1W)
        a("s_cselect_b32 s48, s60, s48")
    a("s_mov_b32 s49, 0")
    a("s_mov_b32 s60, s48")
    a.label("K1_ld")
    issue()
    a("s_add_u32 s49, s49, 1")
    a("s_cmp_lt_u32 s49, 3")
    a("s_cbranch_scc1 K1_ld")
    a("s_cmp_eq_u32 s49, 4")
    a("s_cbranch_scc1 K1_ld")
    a("s_cmp_eq_u32 s49, 5")
    a("s_cbranch_scc0 K1_ld2")
    a("s_waitcnt vmcnt(24)")
    a("s_barrier")
    a.label("K1_ld2")
    a("s_waitcnt vmcnt(16)")
    a("s_barrier")
    a("s_cmp_lt_u32 s49, 8")
    a("s_cbranch_scc1 K1_ld")
    stamp(a, 3)
    a("s_waitcnt vmcnt(8)")
    a("s_barrier")
    a("s_waitcnt vmcnt(0)")
    a("s_barrier")
    stamp_flush(a, 0, 12)
    a("s_endpgm")
    a.label("K1_cons")
    a("s_lshr_b32 s51, s33, 1")
    a("s_and_b32 s52, s33, 1")
    a("v_bfe_u32 v3, v1, 1, 3")
    a("v_lshrrev_b32 v4, 5, v1")
    a("v_xor_b32 v5, v3, v4")
    a("v_and_b32 v6, 31, v1")
    a("s_lshl_b32 s53, s51, 13")
    a("v_lshl_add_u32 v6, v6, 7, s53")
    for ks in range(4):
        a("v_xor_b32 v7, %d, v5" % (2 * ks))
        a("v_lshl_add_u32 v%d, v7, 4, v6" % (12 + ks))
    a("v_bfe_u32 v3, v1, 2, 2")
    a("v_lshl_add_u32 v5, v4, 3, v3")
    a("v_lshlrev_b32 v5, 8, v5")
    a("s_lshl_b32 s53, s52, 1")
    a("v_xor_b32 v6, s53, v3")
    a("v_lshl_add_u32 v5, v6, 6, v5")
    a("v_bfe_u32 v6, v1, 4, 1")
    a("v_lshl_add_u32 v5, v6, 5, v5")
    a("v_and_b32 v6, 3, v1")
    a("v_lshl_add_u32 v5, v6, 3, v5")
    a("v_add_u32 v16, %d, v5" % K1W)
    a("v_xor_b32 v17, 64, v16")
    for i in range(6): a("v_mov_b32 v%d, v%d" % (20 + i, 12 + i))
    ACC = 96
    for i in range(0, 64, 2): a("v_mov_b64 %s, 0" % vr(ACC + i, 2))
    XFR = 32
    def reads(ks, b):
        r = []
        if "k1noread" in EXP: return ["s_nop 0"]
        for t in range(2):
            r.append("ds_read_b128 %s, v%d offset:%d" % (vr(XFR + b * 16 + t * 4, 4), 20 + ks, t * 4096))
        for mt in range(2):
            for rd in range(2):
                r.append("ds_read_b64_tr_b16 %s, v%d offset:%d" % (vr(XFR + b * 16 + 8 + mt * 4 + rd * 2, 2), 24 + mt, ks * 4096 + rd * 1024))
        return r
    def mfmas(b, vtype):
        r = []
        if "k1nomfma" in EXP: return ["s_nop 0"]
        for i in range(2):
            for j in range(2):
                acc = vr(ACC + (i * 2 + j) * 16, 16)
                xf = lambda t: vr(XFR + b * 16 + t * 4, 4)
                wf = lambda t: vr(XFR + b * 16 + 8 + t * 4, 4)
                if vtype: r.append("v_mfma_f32_32x32x16_bf16 %s, %s, %s, %s" % (acc, xf(i), wf(j), acc))
                else: r.append("v_mfma_f32_32x32x16_bf16 %s, %s, %s, %s" % (acc, wf(i), xf(j), acc))
        return r
    a("s_lshl_b32 s53, s40, 3")
    a("s_lshl_b32 s54, s52, 2")
    a("s_add_u32 s53, s53, s54")
    a("s_lshl_b32 s53, s53, 16")
    a("s_lshl_b32 s54, s38, 2")
    a("s_lshl_b32 s55, s51, 1")
    a("s_add_u32 s54, s54, s55")
    a("s_lshl_b32 s54, s54, 10")
    a("s_add_u32 s53, s53, s54")
    a("s_lshl_b32 s54, s39, 21")
    a("s_add_u32 s53, s53, s54")
    a("s_cmp_eq_u32 s39, 0")
    a("s_cselect_b32 s56, %s, 1.0" % f32(QSCALE))
    a("s_mov_b32 s49, 0")
    a("s_mov_b32 s54, 0")
    a("s_waitcnt lgkmcnt(0)")
    srd(a, 24, 12, WS_USED)
    stamp(a, 1)
    a("s_barrier")
    stamp(a, 2)
    for r in reads(0, 0): a(r)
    for r in reads(1, 1): a(r)
    a("s_cmp_eq_u32 s39, 2")
    a("s_cbranch_scc1 K1_loop_v")
    for vtype in (0, 1):
        L = "K1_loop_v" if vtype else "K1_loop_qk"
        a.label(L)
        for ks in range(4):
            if ks == 2:
                a("s_add_u32 s54, s54, 16384")
                a("s_cmp_ge_u32 s54, %d" % K1W)
                a("s_cselect_b32 s54, 0, s54")
                for i in range(6): a("v_add_u32 v%d, s54, v%d" % (20 + i, 12 + i))
                a("s_cmp_eq_u32 s49, 7")
                a("s_cbranch_scc1 %s_nb" % L)
                a("s_barrier")
                a.label(L + "_nb")
            a("s_waitcnt lgkmcnt(6)")
            rd = reads((ks + 2) % 4, (ks + 2) % 4)
            mf = mfmas(ks, vtype)
            for n in range(len(mf)):
                a(mf[n])
                for r in rd[2 * n:2 * n + 2]: a(r)
        a("s_add_u32 s49, s49, 1")
        a("s_cmp_lt_u32 s49, 8")
        a("s_cbranch_scc1 %s" % L)
        a("s_waitcnt lgkmcnt(0)")
        stamp(a, 3)
        if not vtype:
            a("v_lshlrev_b32 v3, 4, v1")
        else:
            a("v_bfe_u32 v3, v1, 4, 1")
            a("v_lshlrev_b32 v3, 16, v3")
            a("v_lshrrev_b32 v4, 5, v1")
            a("v_lshl_add_u32 v3, v4, 8, v3")
            a("v_and_b32 v4, 15, v1")
            a("v_lshl_add_u32 v3, v4, 4, v3")
        a("s_nop 7")
        for i in range(2):
            for j in range(2):
                base = ACC + (i * 2 + j) * 16
                if i == 1 and j == 1: a("s_nop 3")
                for half in range(2):
                    t = 32 + ((i * 4 + j * 2 + half) % 4) * 4
                    for k in range(4):
                        r0 = base + half * 8 + 2 * k
                        if not vtype:
                            a("v_pk_mul_f32 %s, %s, s[56:57] op_sel_hi:[1,0]" % (vr(r0, 2), vr(r0, 2)))
                        a("v_cvt_pk_bf16_f32 v%d, v%d, v%d" % (t + k, r0, r0 + 1))
                    if not vtype:
                        a("s_add_u32 s54, s53, %d" % ((2 * i + half) * 65536))
                        a("buffer_store_dwordx4 %s, v3, s[24:27], s54 offen offset:%d %s" % (vr(t, 4), j * 1024, QKVPOL))
                    else:
                        a("s_add_u32 s54, s53, %d" % (2 * j * 65536))
                        a("buffer_store_dwordx4 %s, v3, s[24:27], s54 offen offset:%d %s" % (vr(t, 4), i * 1024 + half * 512, QKVPOL))
        stamp_flush(a, 0, 12)
        a("s_endpgm")
    a.label("K1_aux")
    RS = 1040
    a("s_sub_u32 s36, s35, 24")
    a("s_lshl_b32 s37, s34, 3")
    a("s_add_u32 s36, s36, s37")
    a("v_lshrrev_b32 v3, 4, v1")
    a("v_and_b32 v4, 15, v1")
    a("v_lshlrev_b32 v5, 4, v4")
    a("v_lshl_add_u32 v6, v3, 10, v5")
    a("v_lshlrev_b32 v7, 4, v1")
    a("s_lshl_b32 s37, s36, 15")
    a("s_lshl_b32 s38, s33, 12")
    a("s_add_u32 s37, s37, s38")
    a("s_waitcnt lgkmcnt(0)")
    srd(a, 16, 4, 2048 * 1024)
    srd(a, 28, 10, 1024)
    XR = 32; GR = 48; D0 = 64; CP = 96
    for t in range(4):
        a("buffer_load_dwordx4 %s, v6, s[16:19], s37 offen offset:%d" % (vr(XR + 4 * t, 4), t * 256))
    for t in range(4):
        a("buffer_load_dwordx4 %s, v5, s[28:31], 0 offen offset:%d" % (vr(GR + 4 * t, 4), t * 256))
    stamp(a, 1)
    srd(a, 20, 8, 2048 * 2752)
    srd(a, 24, 12, WS_USED)
    a("s_lshl_b32 s43, s36, 4")
    a("s_lshl_b32 s44, s33, 1")
    a("s_add_u32 s43, s43, s44")
    a("s_mul_i32 s44, s43, 5504")
    a("s_add_u32 s44, s44, 2752")
    a("s_add_u32 s45, s44, 5504")
    a("s_mul_i32 s46, s43, 2816")
    a("s_add_u32 s46, s46, %d" % W1O)
    a("s_add_u32 s47, s46, 2816")
    a("s_mul_i32 s38, s34, 640")
    a("s_sub_u32 s39, s34, 4")
    a("s_mul_i32 s39, s39, 768")
    a("s_cmp_lt_u32 s34, 4")
    a("s_cselect_b32 s38, s38, s39")
    a("s_movk_i32 s39, 640")
    a("s_cselect_b32 s39, 512, s39")
    a("s_cmp_eq_u32 s34, 7")
    a("s_cselect_b32 s39, 384, s39")
    a("v_and_b32 v28, 7, v1")
    a("v_lshlrev_b32 v28, 7, v28")
    a("v_min_u32 v28, s39, v28")
    a("v_lshrrev_b32 v9, 3, v1")
    a("v_mul_u32_u24 v9, 5504, v9")
    a("v_add_u32 v28, v28, v9")
    a("s_sub_u32 s40, s35, 24")
    a("s_lshl_b32 s40, s40, 3")
    a("s_add_u32 s40, s40, s33")
    a("s_mul_i32 s40, s40, %d" % (8 * 5504))
    a("s_add_u32 s38, s38, s40")
    a("v_bfe_u32 v29, v1, 2, 2")
    a("v_lshl_add_u32 v29, v3, 2, v29")
    a("v_and_b32 v30, 3, v1")
    a("v_lshlrev_b32 v30, 3, v30")
    a("v_mul_u32_u24 v29, %d, v29" % (2 * RS))
    a("v_add_u32 v29, v29, v30")
    a("s_lshl_b32 s41, s33, 7")
    a("v_add_u32 v29, s41, v29")
    a("s_lshl_b32 s40, s36, 15")
    a("s_lshl_b32 s41, s33, 12")
    a("s_add_u32 s40, s40, s41")
    a("s_add_u32 s40, s40, %d" % HT)
    a("s_lshl_b32 s42, s36, 7")
    a("s_lshl_b32 s41, s33, 4")
    a("s_add_u32 s42, s42, s41")
    a("s_add_u32 s42, s42, %d" % GW)
    a("s_lshl_b32 s41, s33, 2")
    a("v_add_u32 v9, s41, v3")
    a("v_mul_u32_u24 v9, %d, v9" % RS)
    a("v_add_u32 v9, v9, v5")
    a("v_lshlrev_b32 v30, 2, v3")
    a("v_mov_b32 v8, 0x3f803f80")
    a("v_mov_b64 v[10:11], 0")
    a("v_mov_b64 v[12:13], 0")
    def w1loads():
        for r in range(2):
            for t in range(3):
                a("buffer_load_dwordx4 %s, v7, s[20:23], s%d offen offset:%d" % (vr(CP + 12 * r + 4 * t, 4), 44 + r, t * 1024))
    if "w1early" in EXP: w1loads()
    a("s_waitcnt vmcnt(%d)" % (6 if "w1early" in EXP else 0))
    stamp(a, 2)
    if "w1early" not in EXP: w1loads()
    for i in range(16):
        a("v_dot2c_f32_bf16 v%d, v%d, v8" % (10 + (i & 1), XR + i))
        a("v_dot2c_f32_bf16 v%d, v%d, v%d" % (12 + (i & 1), XR + i, GR + i))
    for i in range(16):
        a("v_lshlrev_b32 v%d, 16, v%d" % (D0 + 2 * i, XR + i))
        a("v_and_b32 v%d, 0xffff0000, v%d" % (D0 + 2 * i + 1, XR + i))
    a("v_add_f32 v10, v10, v11")
    a("v_add_f32 v12, v12, v13")
    def red(regs):
        for pat in ("quad_perm:[1,0,3,2]", "quad_perm:[2,3,0,1]", "row_half_mirror", "row_mirror"):
            a("s_nop 1")
            for r in regs:
                a("v_add_f32_dpp v%d, v%d, v%d %s row_mask:0xf bank_mask:0xf" % (r, r, r, pat))
    red([10, 12])
    a("v_mul_f32 v14, %s, v10" % f32(1.0 / 512))
    a("v_mov_b64 v[16:17], 0")
    a("v_mov_b64 v[18:19], 0")
    for i in range(16):
        p = vr(D0 + 2 * i, 2)
        a("v_pk_add_f32 %s, %s, v[14:15] op_sel_hi:[1,0] neg_lo:[0,1] neg_hi:[0,1]" % (p, p))
    for i in range(16):
        p = vr(D0 + 2 * i, 2); ac = vr(16 + 2 * (i & 1), 2)
        a("v_pk_fma_f32 %s, %s, %s, %s" % (ac, p, p, ac))
    a("v_add_f32 v16, v16, v17")
    a("v_add_f32 v18, v18, v19")
    a("v_add_f32 v16, v16, v18")
    red([16])
    a("v_mul_f32 v16, %s, v16" % f32(1.0 / 512))
    a("v_cvt_pk_bf16_f32 v16, v16, v14")
    a("v_cvt_pk_bf16_f32 v12, v12, v12")
    a("v_and_b32 v17, 0xffff0000, v16")
    a("v_lshlrev_b32 v16, 16, v16")
    a("v_lshlrev_b32 v12, 16, v12")
    a("v_add_f32 v16, %s, v16" % f32(1e-5))
    a("v_mul_f32 v12, %s, v12" % f32(-1.4426950408889634))
    a("v_cvt_pk_bf16_f32 v16, v16, v16")
    a("v_exp_f32 v12, v12")
    a("v_lshlrev_b32 v16, 16, v16")
    a("v_sqrt_f32 v16, v16")
    a("v_add_f32 v12, 1.0, v12")
    a("v_cvt_pk_bf16_f32 v16, v16, v16")
    a("v_rcp_f32 v12, v12")
    a("v_lshlrev_b32 v16, 16, v16")
    a("v_rcp_f32 v20, v16")
    a("v_sub_f32 v18, v14, v17")
    a("v_cvt_pk_bf16_f32 v12, v12, v12")
    a("v_mul_f32 v22, v18, v20")
    a("v_lshlrev_b32 v12, 16, v12")
    for t in range(4):
        for k in range(4):
            p = vr(D0 + 2 * (4 * t + k), 2)
            a("v_pk_fma_f32 %s, %s, v[20:21], v[22:23] op_sel_hi:[1,0,0]" % (p, p))
        for k in range(4):
            i = 4 * t + k
            a("v_cvt_pk_bf16_f32 v%d, v%d, v%d" % (XR + i, D0 + 2 * i, D0 + 2 * i + 1))
        a("ds_write_b128 v9, %s offset:%d" % (vr(XR + 4 * t, 4), t * 256))
    a("buffer_store_dword v12, v30, s[24:27], s42 offen")
    a("s_waitcnt lgkmcnt(0)")
    stamp(a, 3)
    a("s_barrier")
    for d in range(4):
        for rd in range(2):
            a("ds_read_b64_tr_b16 %s, v29 offset:%d" % (vr(32 + 4 * d + 2 * rd, 2), 32 * d + rd * RS))
    for d in range(4):
        a("s_waitcnt lgkmcnt(%d)" % (6 - 2 * d))
        a("buffer_store_dwordx4 %s, v7, s[24:27], s40 offen offset:%d %s" % (vr(32 + 4 * d, 4), d * 1024, AUXPOL))
    NT = 0 if "now1pf" in EXP else 2
    for t in range(NT):
        a("buffer_load_dword v%d, v28, s[20:23], s38 offen" % (24 + t))
        a("s_add_u32 s38, s38, %d" % (512 * 5504))
    a("s_mov_b32 s48, -1")
    a("s_mov_b32 s49, 0xffff")
    a("s_waitcnt vmcnt(%d)" % (NT + 5))
    stamp(a, 4)
    for r in range(2):
        for t in range(3):
            if t == 2: a("s_mov_b64 exec, s[48:49]")
            a("buffer_store_dwordx4 %s, v7, s[24:27], s%d offen offset:%d %s" % (vr(CP + 12 * r + 4 * t, 4), 46 + r, t * 1024, AUXPOL))
            if t == 2: a("s_mov_b64 exec, -1")
    stamp_flush(a, 0, 12)
    a.label("K1_end")
    a("s_endpgm")
    return a.text(), 160

NRM = 6; MOFF = 33792; CNT = 33280
def lds_sync(a, idx, name, vt):
    a("v_mov_b32 v%d, %d" % (vt, CNT + 4 * idx))
    a("v_mov_b32 v%d, 1" % (vt + 1))
    a("s_mov_b64 exec, 1")
    a("ds_add_u32 v%d, v%d" % (vt, vt + 1))
    a("s_mov_b64 exec, -1")
    a.label(name)
    a("ds_read_b32 v%d, v%d" % (vt + 1, vt))
    a("s_waitcnt lgkmcnt(0)")
    a("v_readfirstlane_b32 s68, v%d" % (vt + 1))
    a("s_cmp_ge_u32 s68, 4")
    a("s_cbranch_scc0 %s" % name)
def gen_k2():
    a = Asm()
    a("s_cmp_ge_u32 s2, 256")
    a("s_cbranch_scc1 K2_end")
    stamps_init(a)
    a("s_load_dwordx4 s[8:11], s[0:1], 32")
    a("s_load_dwordx2 s[12:13], s[0:1], 88")
    a("s_load_dwordx2 s[4:5], s[0:1], 16")
    a("s_load_dwordx2 s[6:7], s[0:1], 48")
    a("v_and_b32 v1, 63, v0")
    a("v_lshrrev_b32 v2, 6, v0")
    a("s_and_b32 s34, s2, 7")
    a("v_readfirstlane_b32 s33, v2")
    a("s_lshr_b32 s35, s2, 3")
    a("v_lshlrev_b32 v2, 4, v1")
    a("v_mov_b32 v3, %d" % CNT)
    a("v_mov_b64 v[4:5], 0")
    a("ds_write_b64 v3, v[4:5]")
    a("ds_write_b64 v3, v[4:5] offset:8")
    a("s_waitcnt lgkmcnt(0)")
    a("s_barrier")
    a("s_cmp_lt_u32 s33, 4")
    a("s_cbranch_scc1 K2_attn")
    a("s_sub_u32 s33, s33, 4")
    a("s_cmp_eq_u32 s34, 7")
    a("s_cbranch_scc1 K2_d7")
    a("s_cmp_ge_u32 s35, 30")
    a("s_cbranch_scc1 K2_pref")
    a("s_cmp_lt_u32 s34, 4")
    a("s_cbranch_scc0 K2_d5")
    a("s_mul_i32 s36, s34, 5")
    a("s_mov_b32 s37, s35")
    a.label("K2_d6")
    a("s_mul_i32 s38, s37, 43")
    a("s_lshr_b32 s38, s38, 8")
    a("s_mul_i32 s39, s38, 6")
    a("s_sub_u32 s39, s37, s39")
    a("s_add_u32 s38, s38, s36")
    a("s_branch K2_dd")
    a.label("K2_d7")
    a("s_mov_b32 s36, 20")
    a("s_sub_u32 s37, s35, 20")
    a("s_cmp_ge_u32 s35, 20")
    a("s_cbranch_scc1 K2_d6")
    a.label("K2_d5")
    a("s_sub_u32 s36, s34, 4")
    a("s_mul_i32 s36, s36, 6")
    a("s_mul_i32 s38, s35, 52")
    a("s_lshr_b32 s38, s38, 8")
    a("s_mul_i32 s39, s38, 5")
    a("s_sub_u32 s39, s35, s39")
    a("s_add_u32 s39, s39, 6")
    a("s_add_u32 s38, s38, s36")
    a.label("K2_dd")

    a("v_lshrrev_b32 v3, 3, v1")
    a("v_mul_u32_u24 v153, 2816, v3")
    a("v_mul_u32_u24 v3, 5504, v3")
    a("v_lshrrev_b32 v4, 4, v1")
    a("v_lshlrev_b32 v4, 1, v4")
    a("v_and_b32 v5, 7, v1")
    a("v_xor_b32 v4, v4, v5")
    a("v_lshl_add_u32 v3, v4, 4, v3")
    a("v_lshl_add_u32 v153, v4, 4, v153")
    a("s_mul_i32 s54, s33, %d" % (256 * 5504))
    a("s_lshl_b32 s40, s38, 7")
    a("s_add_u32 s54, s54, s40")
    a("s_mul_i32 s53, s33, %d" % (256 * 2816))
    a("s_add_u32 s53, s53, s40")
    a("s_add_u32 s53, s53, %d" % W1O)
    a("s_lshl_b32 s55, s33, 19")
    a("s_mul_i32 s40, s39, 3072")
    a("s_add_u32 s55, s55, s40")
    a("s_add_u32 s55, s55, %d" % HT)
    a("s_mul_i32 s40, s33, %d" % (NRM * 4096))
    a("s_add_u32 s40, s40, %d" % MOFF)
    if "norot2" not in EXP:
        a("s_mov_b32 s58, s54")
        a("s_mov_b32 s59, s55")
        a("s_mov_b32 s60, s53")
        a("s_add_u32 s57, s55, %d" % (16 * 32768))
        a("s_mul_i32 s41, s38, 3")
        a("s_mul_i32 s42, s39, 5")
        a("s_add_u32 s41, s41, s42")
        a("s_and_b32 s41, s41, 15")
        a("s_mul_i32 s42, s41, %d" % (16 * 5504))
        a("s_add_u32 s54, s54, s42")
        a("s_mul_i32 s42, s41, %d" % (16 * 2816))
        a("s_add_u32 s53, s53, s42")
        a("s_lshl_b32 s42, s41, 15")
        a("s_add_u32 s55, s55, s42")
    a("s_waitcnt lgkmcnt(0)")
    srd(a, 16, 8, 2048 * 2752)
    srd(a, 24, 12, WS_USED)
    ACC = 8; AF = 56; BF = 160
    def loads(b):
        r = []
        for q in range(4):
            r.append("s_add_u32 m0, s40, %d" % (b * 4096 + q * 1024))
            if q < 2:
                r.append("s_add_u32 s50, s54, %d" % (q * 8 * 5504))
                r.append("buffer_load_dwordx4 v3, s[16:19], s50 offen lds")
            else:
                r.append("s_add_u32 s50, s53, %d" % ((q - 2) * 8 * 2816))
                r.append("buffer_load_dwordx4 v153, s[24:27], s50 offen lds")
        for i in range(3):
            r.append("buffer_load_dwordx4 %s, v2, s[24:27], s55 offen offset:%d" % (vr(BF + 12 * b + 4 * i, 4), i * 1024))
        r.append("s_add_u32 s54, s54, %d" % (16 * 5504))
        r.append("s_add_u32 s53, s53, %d" % (16 * 2816))
        r.append("s_add_u32 s55, s55, 32768")
        if "norot2" not in EXP:
            r.append("s_cmp_eq_u32 s55, s57")
            r.append("s_cselect_b32 s54, s58, s54")
            r.append("s_cselect_b32 s55, s59, s55")
            r.append("s_cselect_b32 s53, s60, s53")
        return r
    def trreads(b):
        return ["ds_read_b64_tr_b16 %s, v%d offset:%d" % (vr(AF + 16 * (b & 1) + 4 * e + 2 * rd, 2), 140 + e, b * 4096 + rd * 2048) for e in range(4) for rd in range(2)]
    for b in range(NRM - 1):
        for l in loads(b): a(l)
    stamp(a, 1)
    srd(a, 28, 10, 2752)
    a("v_bfe_u32 v4, v1, 2, 2")
    a("v_lshrrev_b32 v5, 4, v1")
    a("v_lshl_add_u32 v4, v5, 2, v4")
    a("v_bfe_u32 v5, v4, 1, 2")
    a("v_lshlrev_b32 v5, 5, v5")
    a("v_lshl_add_u32 v5, v4, 7, v5")
    a("v_and_b32 v4, 3, v1")
    a("v_lshl_add_u32 v5, v4, 3, v5")
    a("v_add_u32 v140, s40, v5")
    for e in range(1, 4): a("v_xor_b32 v%d, %d, v140" % (140 + e, e << 5))
    for i in range(0, 48, 2): a("v_mov_b64 %s, 0" % vr(ACC + i, 2))
    a("v_lshrrev_b32 v4, 4, v1")
    a("v_lshlrev_b32 v5, 3, v4")
    a("s_lshl_b32 s44, s38, 7")
    a("s_lshl_b32 s45, s33, 5")
    a("s_add_u32 s44, s44, s45")
    a("buffer_load_dwordx2 v[146:147], v5, s[28:31], s44 offen")
    a("v_and_b32 v6, 15, v1")
    a("v_mul_u32_u24 v144, 272, v6")
    a("v_lshl_add_u32 v145, v4, 4, v144")
    a("s_lshl_b32 s45, s33, 6")
    a("v_add_u32 v145, s45, v145")
    a("v_lshl_add_u32 v144, v4, 4, v144")
    a("s_mul_i32 s45, s33, 13056")
    a("s_add_u32 s45, s45, %d" % MOFF)
    a("v_add_u32 v144, s45, v144")
    a("v_add_u32 v145, %d, v145" % MOFF)
    a("s_mul_i32 s45, s39, 48")
    a("v_add_u32 v6, s45, v6")
    a("v_lshrrev_b32 v7, 5, v1")
    a("v_bfe_u32 v5, v1, 4, 1")
    a("v_lshlrev_b32 v5, 3, v5")
    a("v_lshl_add_u32 v5, v7, 9, v5")
    a("s_mov_b32 s45, 176128")
    for dt in range(3):
        a("v_add_u32 v7, %d, v6" % (16 * dt))
        a("v_lshrrev_b32 v148, 6, v7")
        a("v_mul_lo_u32 v148, v148, s45")
        a("v_bfe_u32 v149, v7, 5, 1")
        a("v_lshl_add_u32 v148, v149, 10, v148")
        a("v_and_b32 v149, 31, v7")
        a("v_lshl_add_u32 v148, v149, 4, v148")
        a("v_add_u32 v%d, v148, v5" % (150 + dt))
    a("s_lshl_b32 s47, s38, 2")
    a("s_add_u32 s47, s47, s33")
    a("s_lshl_b32 s46, s47, 11")
    a("s_add_u32 s46, s46, %d" % UF)
    a("s_mov_b32 s48, %s" % f32(GC2))
    a("s_mov_b32 s49, %s" % f32(GC1))
    a("s_mov_b32 s44, 0")
    a("s_waitcnt vmcnt(%d)" % (7 * (NRM - 2) + 1))
    if PRIO: a("s_setprio %s" % PRIO)
    for r in trreads(0): a(r)
    def step(b, ld, wait, tr=True, skip=None):
        mf = []
        for ai in range(4):
            for bi in range(3):
                acc = vr(ACC + (ai * 3 + bi) * 4, 4)
                mf.append("v_mfma_f32_16x16x32_bf16 %s, %s, %s, %s" % (acc, vr(AF + 16 * (b & 1) + 4 * ai, 4), vr(BF + 12 * b + 4 * bi, 4), acc))
        if "ldfirst" in EXP:
            if skip:
                a("s_cmp_eq_u32 s44, 1")
                a("s_cbranch_scc1 %s" % skip)
            for l in ld: a(l)
            if ld and not skip: a("s_waitcnt vmcnt(%d)" % (wait + 7))
            elif skip:
                a("s_waitcnt vmcnt(%d)" % (wait + 7))
                a.label(skip)
                a("s_waitcnt vmcnt(%d)" % (wait + 7)) if False else None
                a("s_nop 0")
            if tr:
                if not ld: a("s_waitcnt vmcnt(%d)" % wait)
                if skip:
                    a("s_cmp_eq_u32 s44, 1")
                    a("s_cbranch_scc0 %s_b" % skip)
                    a("s_waitcnt vmcnt(%d)" % wait)
                    a.label(skip + "_b")
                for r in trreads((b + 1) % NRM): a(r)
                a("s_waitcnt lgkmcnt(8)")
            else:
                a("s_waitcnt lgkmcnt(0)")
            for m in mf: a(m)
            return
        if tr:
            a("s_waitcnt vmcnt(%d)" % wait)
            for r in trreads((b + 1) % NRM): a(r)
            a("s_waitcnt lgkmcnt(8)")
        else:
            a("s_waitcnt lgkmcnt(0)")
        if skip:
            for m in mf[:4]: a(m)
            a("s_cmp_eq_u32 s44, 1")
            a("s_cbranch_scc1 %s" % skip)
            for l in ld: a(l)
            a.label(skip)
            for m in mf[4:]: a(m)
            return
        n = 0
        for m in mf:
            a(m)
            for _ in range(2):
                if n < len(ld): a(ld[n]); n += 1
    W = 7 * (NRM - 3)
    a.label("K2_mloop")
    for b in range(NRM): step(b, loads((b + NRM - 1) % NRM), W, skip="K2_msk" if b == NRM - 1 else None)
    a("s_add_u32 s44, s44, 1")
    a("s_cmp_lt_u32 s44, 2")
    a("s_cbranch_scc1 K2_mloop")
    step(0, [], 14)
    step(1, [], 7)
    step(2, [], 0)
    step(3, [], 0, tr=False)
    stamp(a, 2)
    if "nopref" not in EXP:
        a("s_mul_i32 s44, s38, 11")
        a("s_add_u32 s44, s44, s39")
        a("s_mul_i32 s45, s33, 242")
        a("s_add_u32 s44, s44, s45")
        a("s_cmp_lt_u32 s44, 312")
        a("s_cbranch_scc0 K2_np")
        a("s_mul_i32 s45, s44, 171")
        a("s_lshr_b32 s45, s45, 9")
        a("s_mul_i32 s50, s45, 3")
        a("s_sub_u32 s50, s44, s50")
        a("s_mul_i32 s50, s50, 232")
        a("s_add_u32 s50, s50, s45")
        a("s_add_u32 s50, s50, %d" % PFSPLIT)
        a("s_lshl_b32 s50, s50, 13")
        srd(a, 16, 6, 1376 * 4096)
        a("v_lshlrev_b32 v154, 7, v1")
        a("buffer_load_dword v155, v154, s[16:19], s50 offen")
        a.label("K2_np")
    lds_sync(a, 1, "K2_sy1", 4)
    for ai in range(4):
        for bi in range(3):
            a("ds_write_b128 v144, %s offset:%d" % (vr(ACC + (ai * 3 + bi) * 4, 4), bi * 16 * 272 + ai * 64))
    for j in range(2):
        a("v_lshlrev_b32 v%d, 16, v%d" % (136 + 2 * j, 146 + j))
        a("v_and_b32 v%d, 0xffff0000, v%d" % (137 + 2 * j, 146 + j))
    a("s_waitcnt lgkmcnt(0)")
    lds_sync(a, 2, "K2_sy2", 4)
    a("s_cmp_ge_u32 s47, 86")
    a("s_cbranch_scc1 K2_mdone")
    R = 56
    for k in range(3):
        for wv in range(4):
            a("ds_read_b128 %s, v145 offset:%d" % (vr(R + 16 * k + 4 * wv, 4), wv * 13056 + k * 16 * 272))
    for k in range(3):
        r = R + 16 * k
        if k == 2:
            a("s_cmp_eq_u32 s39, 10")
            a("s_cbranch_scc1 K2_mdone")
        a("s_waitcnt lgkmcnt(%d)" % (8 - 4 * k))
        a("v_pk_add_f32 %s, %s, %s" % (vr(r, 2), vr(r, 2), vr(r + 4, 2)))
        a("v_pk_add_f32 %s, %s, %s" % (vr(r + 2, 2), vr(r + 2, 2), vr(r + 6, 2)))
        a("v_pk_add_f32 %s, %s, %s" % (vr(r + 8, 2), vr(r + 8, 2), vr(r + 12, 2)))
        a("v_pk_add_f32 %s, %s, %s" % (vr(r + 10, 2), vr(r + 10, 2), vr(r + 14, 2)))
        a("v_pk_add_f32 %s, %s, %s" % (vr(r, 2), vr(r, 2), vr(136, 2)))
        a("v_pk_add_f32 %s, %s, %s" % (vr(r + 2, 2), vr(r + 2, 2), vr(138, 2)))
        a("v_pk_add_f32 %s, %s, %s" % (vr(r, 2), vr(r, 2), vr(r + 8, 2)))
        a("v_pk_add_f32 %s, %s, %s" % (vr(r + 2, 2), vr(r + 2, 2), vr(r + 10, 2)))
        a("v_pk_mul_f32 %s, %s, %s" % (vr(r + 8, 2), vr(r, 2), vr(r, 2)))
        a("v_pk_mul_f32 %s, %s, %s" % (vr(r + 10, 2), vr(r + 2, 2), vr(r + 2, 2)))
        for j in range(4): a("v_mov_b32 v%d, s49" % (r + 12 + j))
        for j in range(4): a("v_fmac_f32 v%d, s48, v%d" % (r + 12 + j, r + 8 + j))
        a("v_pk_mul_f32 %s, %s, %s" % (vr(r + 8, 2), vr(r, 2), vr(r + 12, 2)))
        a("v_pk_mul_f32 %s, %s, %s" % (vr(r + 10, 2), vr(r + 2, 2), vr(r + 14, 2)))
        for j in range(4): a("v_exp_f32 v%d, v%d" % (r + 8 + j, r + 8 + j))
        for j in range(4): a("v_add_f32 v%d, 1.0, v%d" % (r + 8 + j, r + 8 + j))
        for j in range(4): a("v_rcp_f32 v%d, v%d" % (r + 8 + j, r + 8 + j))
        a("s_nop 0")
        a("v_pk_mul_f32 %s, %s, %s" % (vr(r, 2), vr(r, 2), vr(r + 8, 2)))
        a("v_pk_mul_f32 %s, %s, %s" % (vr(r + 2, 2), vr(r + 2, 2), vr(r + 10, 2)))
        a("v_cvt_pk_bf16_f32 v%d, v%d, v%d" % (r + 4, r, r + 1))
        a("v_cvt_pk_bf16_f32 v%d, v%d, v%d" % (r + 5, r + 2, r + 3))
        a("buffer_store_dwordx2 %s, v%d, s[24:27], s46 offen" % (vr(r + 4, 2), 150 + k))
    a.label("K2_mdone")
    stamp(a, 3)
    stamp_flush(a, 1, 12)
    a("s_endpgm")
    a.label("K2_pref")
    if "nopref" in EXP: a("s_endpgm")
    a("s_lshl_b32 s36, s34, 1")
    a("s_add_u32 s36, s36, s35")
    a("s_sub_u32 s36, s36, 30")
    a("s_lshl_b32 s36, s36, 2")
    a("s_add_u32 s36, s36, s33")
    a("v_lshlrev_b32 v4, 7, v1")
    a("s_waitcnt lgkmcnt(0)")
    srd(a, 16, 6, 1376 * 4096)
    srd(a, 20, 4, 512 * 1024)
    a.label("K2_pf1")
    a("s_cmp_lt_u32 s36, 64")
    a("s_cbranch_scc0 K2_pf2")
    a("s_lshl_b32 s39, s36, 13")
    a("buffer_load_dword v8, v4, s[20:23], s39 offen")
    a("s_add_u32 s36, s36, 56")
    a("s_branch K2_pf1")
    a.label("K2_pf2")
    a("s_sub_u32 s37, s36, 64")
    a("s_mul_i32 s38, s37, 171")
    a("s_lshr_b32 s38, s38, 9")
    a("s_mul_i32 s39, s38, 3")
    a("s_sub_u32 s39, s37, s39")
    a("s_mul_i32 s39, s39, 232")
    a("s_add_u32 s39, s39, s38")
    a("s_lshl_b32 s39, s39, 13")
    a("buffer_load_dword v8, v4, s[16:19], s39 offen")
    a("s_add_u32 s36, s36, 56")
    a("s_cmp_lt_u32 s36, %d" % (64 + 3 * PFSPLIT))
    a("s_cbranch_scc1 K2_pf2")
    stamp_flush(a, 1, 12)
    a("s_endpgm")
    a.label("K2_attn")
    if "noattn" in EXP: a("s_endpgm")
    VS = 1056; VOFF = 16384
    a("s_lshl_b32 s36, s34, 2")
    a("s_and_b32 s37, s35, 3")
    a("s_add_u32 s36, s36, s37")
    a("s_lshr_b32 s37, s35, 2")
    a("s_lshl_b32 s38, s36, 16")
    a("s_add_u32 s39, s38, %d" % KF)
    a("s_add_u32 s40, s38, %d" % VF)
    a("s_lshl_b32 s41, s37, 3")
    a("s_add_u32 s41, s41, s33")
    a("s_lshl_b32 s42, s41, 10")
    a("s_add_u32 s42, s42, s38")
    a("s_add_u32 s43, s42, 4096")
    a("s_lshl_b32 s44, s37, 3")
    a("s_lshl_b32 s45, s33, 2")
    a("s_add_u32 s44, s44, s45")
    a("s_sub_u32 s44, s44, 8")
    a("v_lshrrev_b32 v3, 5, v1")
    a("v_lshlrev_b32 v200, 9, v3")
    a("s_lshl_b32 s45, s33, 12")
    a("s_mul_i32 s46, s33, %d" % (4 * VS))
    a("s_add_u32 s46, s46, %d" % VOFF)
    a("v_mov_b32 v203, s46")
    a("s_lshl_b32 s50, s44, 10")
    a("s_cmp_lt_i32 s44, 0")
    a("s_cselect_b64 s[48:49], -1, 0")
    a("s_cselect_b32 s51, 0, s50")
    a("s_cselect_b32 s52, 0, 1024")
    a("s_cselect_b32 s50, %d, s50" % BIG)
    a("s_cselect_b32 s56, 0, 0x3f803f80")
    a("v_cndmask_b32 v202, v2, v200, s[48:49]")
    a("v_mov_b32 v204, s56")
    a("v_mov_b32 v205, s56")
    a("s_waitcnt lgkmcnt(0)")
    srd_off(a, 16, 12, 39, 65536)
    srd_off(a, 20, 12, 40, 65536)
    srd(a, 24, 12, WS_USED)
    a("buffer_load_dwordx4 v[4:7], v2, s[24:27], s42 offen")
    for u in range(4):
        a("s_add_u32 m0, s45, %d" % (u * 1024))
        a("s_nop 0")
        a("buffer_load_dwordx4 v202, s[16:19], s51 offen lds")
        a("s_add_u32 m0, s46, %d" % (u * VS))
        a("s_add_u32 s51, s51, s52")
        a("buffer_load_dwordx4 v2, s[20:23], s50 offen lds")
        a("s_add_u32 s50, s50, 1024")
        a("ds_write_b64 v203, v[204:205] offset:%d" % (u * VS + 1024))
        a("ds_write_b64 v203, v[204:205] offset:%d" % (u * VS + 1032))
    a("buffer_load_dwordx4 v[208:211], v2, s[24:27], s43 offen")
    stamp(a, 1)
    KB = 8; VB = 20; PB = 36; SB = 48; COLD = 96; CDIAG = 112; CN = 128; OA = 144; C2O = 160; C2D = 176
    a("v_and_b32 v200, 31, v1")
    a("v_lshlrev_b32 v201, 2, v3")
    a("v_sub_u32 v200, v200, v201")
    a("v_mov_b32 v201, %s" % f32(NEGBIG))
    a("v_mov_b32 v202, 0")
    for i0 in range(0, 16, 4):
        for i in range(i0, i0 + 4):
            a("v_cmp_le_i32 s[%d:%d], %d, v200" % (56 + 2 * (i - i0), 57 + 2 * (i - i0), 8 * (i // 4) + i % 4))
        for i in range(i0, i0 + 4):
            m = "s[%d:%d]" % (56 + 2 * (i - i0), 57 + 2 * (i - i0))
            a("v_cndmask_b32 v%d, v201, v202, %s" % (CDIAG + i, m))
            a("v_cndmask_b32 v%d, v202, v201, %s" % (COLD + i, m))
    a("s_lshl_b32 s45, s33, 10")
    a("v_add_u32 v200, s45, v2")
    a("s_mul_i32 s45, s33, %d" % VS)
    a("s_add_u32 s45, s45, %d" % VOFF)
    a("v_and_b32 v204, 15, v1")
    a("v_lshlrev_b32 v204, 4, v204")
    a("v_lshl_add_u32 v204, v3, 8, v204")
    a("v_add_u32 v204, s45, v204")
    a("v_add_u32 v205, 512, v204")
    a("v_bfe_u32 v206, v1, 4, 1")
    a("v_cmp_eq_u32 vcc, 1, v206")
    a("s_add_u32 s45, s45, 1024")
    a("v_mov_b32 v206, s45")
    a("s_lshr_b32 s45, s41, 1")
    a("v_cndmask_b32 v204, v204, v206, vcc")
    a("v_cndmask_b32 v205, v205, v206, vcc")
    a("s_lshl_b32 s45, s45, 16")
    a("s_lshl_b32 s46, s36, 11")
    a("s_add_u32 s45, s45, s46")
    a("s_and_b32 s46, s41, 1")
    a("s_lshl_b32 s46, s46, 10")
    a("s_add_u32 s45, s45, s46")
    a("s_add_u32 s45, s45, %d" % OF)
    a("s_mov_b32 s47, 0")
    a("s_waitcnt vmcnt(0) lgkmcnt(0)")
    lds_sync(a, 0, "K2_sy0", 202)
    stamp(a, 2)
    if "attnloadonly" in EXP: a("s_endpgm")
    a.label("K2_aloop")
    kread = lambda p: "ds_read_b128 %s, v200 offset:%d" % (vr(KB + 4 * (p % 3), 4), p * 1024)
    S = lambda i: SB + 16 * i
    def maxops(sb):
        for i in range(0, 16, 2):
            m = 202 + ((i // 2) & 1)
            a("v_max3_f32 v%d, v%d, v%d, v%d" % (m, m, sb + i, sb + i + 1))
    for p in range(3): a(kread(p))
    a("v_mov_b32 v202, %s" % f32(NEGBIG))
    a("v_mov_b32 v203, %s" % f32(NEGBIG))
    for i in range(0, 16, 2): a("v_mov_b64 %s, 0" % vr(OA + i, 2))
    for p in range(9):
        a("s_waitcnt lgkmcnt(%d)" % min(2, 8 - p))
        c = vr(COLD, 16) if p == 0 else (vr(CDIAG, 16) if p == 8 else "0")
        a("v_mfma_f32_32x32x16_bf16 %s, %s, v[4:7], %s" % (vr(S(p % 3), 16), vr(KB + 4 * (p % 3), 4), c))
        if p + 3 < 9: a(kread(p + 3))
        if p >= 1:
            a("s_nop 7" if p == 1 else "s_nop 1")
            maxops(S((p - 1) % 3))
    for p in range(3): a(kread(p))
    a("s_nop 7")
    maxops(S(8 % 3))
    a("v_max_f32 v202, v202, v203")
    a("v_mov_b32 v203, v202")
    a("s_nop 1")
    a("v_permlane32_swap_b32 v202, v203")
    a("v_max_f32 v202, v202, v203")
    for i in range(0, 16, 2):
        a("v_pk_add_f32 %s, %s, v[202:203] op_sel_hi:[1,0] neg_lo:[0,1] neg_hi:[0,1]" % (vr(C2O + i, 2), vr(COLD + i, 2)))
    a("v_sub_f32 v%d, 0, v202" % CN)
    a("v_sub_f32 v%d, 0, v202" % (CN + 1))
    for i in range(2, 16, 2): a("v_mov_b64 %s, %s" % (vr(CN + i, 2), vr(CN, 2)))
    for i in range(0, 16, 2):
        a("v_pk_add_f32 %s, %s, v[202:203] op_sel_hi:[1,0] neg_lo:[0,1] neg_hi:[0,1]" % (vr(C2D + i, 2), vr(CDIAG + i, 2)))
    def vread(p):
        return ["ds_read_b128 %s, v%d offset:%d" % (vr(VB + 8 * (p % 2) + 4 * i, 4), 204 + i, p * VS) for i in range(2)]
    def smfma(p):
        c = vr(C2O, 16) if p == 0 else (vr(C2D, 16) if p == 8 else vr(CN, 16))
        a("v_mfma_f32_32x32x16_bf16 %s, %s, v[4:7], %s" % (vr(S(p % 2), 16), vr(KB + 4 * (p % 3), 4), c))
    for r in vread(0): a(r)
    a("s_waitcnt lgkmcnt(4)")
    smfma(0)
    a(kread(3))
    for p in range(9):
        if p + 1 < 9:
            a("s_waitcnt lgkmcnt(%d)" % P2_WAIT_K[p])
            smfma(p + 1)
            for r in vread(p + 1): a(r)
            if p + 4 < 9: a(kread(p + 4))
            if p == 0: a("s_nop 7")
        sb = S(p % 2)
        if "noexp" not in EXP:
            for i in range(16): a("v_exp_f32 v%d, v%d" % (sb + i, sb + i))
        else: a("s_nop 7")
        for i in range(8): a("v_cvt_pk_bf16_f32 v%d, v%d, v%d" % (PB + i, sb + 2 * i, sb + 2 * i + 1))
        a("s_waitcnt lgkmcnt(%d)" % P2_WAIT_V[p])
        a("s_nop 0")
        for i in range(2):
            a("v_mfma_f32_32x32x16_bf16 %s, %s, %s, %s" % (vr(OA, 16), vr(VB + 8 * (p % 2) + 4 * i, 4), vr(PB + 4 * i, 4), vr(OA, 16)))
    a("v_add_u32 v200, 4096, v200")
    a("v_add_u32 v204, %d, v204" % (4 * VS))
    a("v_add_u32 v205, %d, v205" % (4 * VS))
    a("v_mov_b64 v[4:5], v[208:209]")
    a("v_mov_b64 v[6:7], v[210:211]")
    a("s_nop 7")
    a("v_rcp_f32 v202, v%d" % (OA + 8))
    a("s_nop 0")
    for i in range(0, 8, 2): a("v_pk_mul_f32 %s, %s, v[202:203] op_sel_hi:[1,0]" % (vr(OA + i, 2), vr(OA + i, 2)))
    for i in range(4): a("v_cvt_pk_bf16_f32 v%d, v%d, v%d" % (212 + i, OA + 2 * i, OA + 2 * i + 1))
    a("buffer_store_dwordx4 v[212:215], v2, s[24:27], s45 offen %s" % K2POL)
    a("s_add_u32 s45, s45, %d" % (2 * 65536))
    a("s_add_u32 s47, s47, 1")
    if STAMPS:
        a("s_cmp_eq_u32 s47, 1")
        a("s_cbranch_scc0 K2_st4")
        stamp(a, 3)
        a.label("K2_st4")
    a("s_cmp_lt_u32 s47, 2")
    a("s_cbranch_scc1 K2_aloop")
    stamp(a, 4)
    stamp_flush(a, 1, 12)
    a.label("K2_end")
    a("s_endpgm")
    return a.text(), 232
PFSPLIT = int(os.environ.get("PFSPLIT", "128"))

def _p2_waits():
    q = ["K0", "K1", "K2", "V0a", "V0b", "K3"]
    wk, wv = [], []
    def need(name): return len(q) - 1 - q.index(name)
    for p in range(9):
        if p + 1 < 9:
            wk.append(need("K%d" % (p + 1)))
            q.extend(["V%da" % (p + 1), "V%db" % (p + 1)])
            if p + 4 < 9: q.append("K%d" % (p + 4))
        wv.append(need("V%db" % p))
    return wk, wv
P2_WAIT_K, P2_WAIT_V = _p2_waits()

def gen_k3():
    a = Asm()
    a("s_cmp_ge_u32 s2, 256")
    a("s_cbranch_scc1 K3_end")
    stamps_init(a)
    a("s_load_dwordx2 s[4:5], s[0:1], 16")
    a("s_load_dwordx4 s[8:11], s[0:1], 48")
    a("s_load_dwordx2 s[14:15], s[0:1], 72")
    a("s_load_dwordx2 s[12:13], s[0:1], 88")
    a("v_and_b32 v1, 63, v0")
    a("v_lshrrev_b32 v2, 6, v0")
    a("s_and_b32 s34, s2, 7")
    a("v_readfirstlane_b32 s33, v2")
    a("s_lshr_b32 s35, s2, 3")
    a("v_lshlrev_b32 v2, 4, v1")
    a("s_lshr_b32 s36, s34, 1")
    a("s_lshl_b32 s36, s36, 3")
    a("s_lshr_b32 s37, s35, 2")
    a("s_add_u32 s36, s36, s37")
    a("s_and_b32 s37, s34, 1")
    a("s_lshl_b32 s37, s37, 2")
    a("s_and_b32 s38, s35, 3")
    a("s_add_u32 s37, s37, s38")
    a("v_lshrrev_b32 v3, 3, v1")
    a("v_bfe_u32 v4, v1, 4, 1")
    a("v_lshlrev_b32 v4, 2, v4")
    a("v_and_b32 v5, 7, v1")
    a("v_xor_b32 v4, v4, v5")
    a("v_lshlrev_b32 v4, 4, v4")
    a("s_lshl_b32 s40, s33, 14")
    ACC = 16; BUF = 80; WF = 144
    NR = 8
    a("s_cmp_eq_u32 s33, 0")
    a("s_cbranch_scc0 K3_mlp2")
    for role in (0, 1):
        if role == 0:
            a("v_lshl_add_u32 v8, v3, 10, v4")
            RDS = 1024; RSTR = 1024; HFSH = 9
            a("s_lshl_b32 s41, s37, 7")
            a("s_lshl_b32 s42, s36, 16")
            a("s_add_u32 s42, s42, %d" % OF)
            a("s_sub_u32 s46, %d, s41" % (512 * 1024))
            a("s_mov_b32 s44, 32")
            a("s_waitcnt lgkmcnt(0)")
            srd_off(a, 16, 4, 41, "s46")
            srd_off(a, 20, 12, 42, 32 * 2048)
        else:
            a.label("K3_mlp2")
            a("v_lshl_add_u32 v8, v3, 12, v4")
            RDS = 512; RSTR = 4096; HFSH = 10
            a("s_sub_u32 s43, s33, 1")
            a("s_mul_i32 s43, s43, 29")
            a("s_cmp_eq_u32 s33, 3")
            a("s_cselect_b32 s44, 28, 29")
            a("s_lshl_b32 s41, s43, 16")
            a("s_lshl_b32 s45, s36, 7")
            a("s_add_u32 s41, s41, s45")
            a("s_mul_i32 s42, s37, 176128")
            a("s_lshl_b32 s46, s43, 11")
            a("s_add_u32 s42, s42, s46")
            a("s_add_u32 s42, s42, %d" % UF)
            a("s_lshl_b32 s46, s44, 16")
            a("s_sub_u32 s46, s46, s45")
            a("s_lshl_b32 s47, s44, 11")
            a("s_waitcnt lgkmcnt(0)")
            srd_off(a, 16, 8, 41, "s46")
            srd_off(a, 20, 12, 42, "s47")
        def loads(b):
            r = []
            r.append("s_add_u32 m0, s40, %d" % (b * 2048))
            r.append("s_add_u32 s50, s48, %d" % (8 * RSTR))
            r.append("buffer_load_dwordx4 v8, s[16:19], s48 offen lds")
            r.append("s_add_u32 m0, s40, %d" % (b * 2048 + 1024))
            r.append("buffer_load_dwordx4 %s, v2, s[20:23], s49 offen" % vr(BUF + 8 * b, 4))
            r.append("buffer_load_dwordx4 v8, s[16:19], s50 offen lds")
            r.append("buffer_load_dwordx4 %s, v2, s[20:23], s49 offen offset:1024" % vr(BUF + 8 * b + 4, 4))
            r.append("s_add_u32 s48, s48, %d" % (16 * RSTR))
            r.append("s_add_u32 s49, s49, 2048")
            if "norot3" not in EXP:
                r.append("s_cmp_eq_u32 s49, s57")
                r.append("s_cselect_b32 s48, 0, s48")
                r.append("s_cselect_b32 s49, 0, s49")
            return r
        def trreads(b):
            r = []
            for mt in range(2):
                for rd in range(2):
                    r.append("ds_read_b64_tr_b16 %s, v%d offset:%d" % (vr(WF + 8 * (b & 1) + 4 * mt + 2 * rd, 2), 10 + mt, b * 2048 + rd * RDS))
            return r
        if "norot3" in EXP:
            a("s_mov_b32 s48, 0")
            a("s_mov_b32 s49, 0")
        else:
            a("s_lshr_b32 s53, s35, 2")
            a("s_lshl_b32 s53, s53, 2")
            a("s_and_b32 s54, s35, 3")
            a("s_mul_i32 s54, s54, 7")
            a("s_add_u32 s53, s53, s54")
            a("s_sub_u32 s54, s53, s44")
            a("s_cmp_ge_u32 s53, s44")
            a("s_cselect_b32 s53, s54, s53")
            a("s_lshl_b32 s48, s53, %d" % ((16 * RSTR).bit_length() - 1))
            a("s_lshl_b32 s49, s53, 11")
            a("s_lshl_b32 s57, s44, 11")
        for b in range(NR - 1):
            for l in loads(b): a(l)
        stamp(a, 1)
        a("v_bfe_u32 v6, v1, 2, 2")
        a("v_lshlrev_b32 v6, 7, v6")
        a("v_bfe_u32 v7, v1, 3, 1")
        a("v_lshl_add_u32 v6, v7, 6, v6")
        a("v_bfe_u32 v7, v1, 4, 1")
        a("v_lshl_add_u32 v6, v7, 5, v6")
        a("v_and_b32 v7, 3, v1")
        a("v_lshl_add_u32 v6, v7, 3, v6")
        a("v_add_u32 v6, s40, v6")
        a("v_lshrrev_b32 v7, 5, v1")
        a("v_lshl_add_u32 v10, v7, %d, v6" % HFSH)
        a("v_xor_b32 v11, 64, v10")
        for i in range(0, 64, 2): a("v_mov_b64 %s, 0" % vr(ACC + i, 2))
        a("s_sub_u32 s51, s44, 2")
        a("s_waitcnt vmcnt(%d)" % (4 * (NR - 2)))
        for r in trreads(0): a(r)
        L = "K3_loop%d" % role
        a.label(L)
        for b in range(NR):
            nb = (b + 1) % NR
            a("s_cmp_lt_i32 s51, 5")
            a("s_cbranch_scc1 %s_t%d" % (L, b))
            a("s_waitcnt vmcnt(%d)" % (4 * (NR - 3)))
            a.label("%s_r%d" % (L, b))
            for r in trreads(nb): a(r)
            a("s_waitcnt lgkmcnt(4)")
            mf = []
            for i in range(2):
                for j in range(2):
                    acc = vr(ACC + (i * 2 + j) * 16, 16)
                    wf = lambda t: vr(WF + 8 * (b & 1) + 4 * t, 4)
                    af = lambda t: vr(BUF + 8 * b + 4 * t, 4)
                    if role == 0: mf.append("v_mfma_f32_32x32x16_bf16 %s, %s, %s, %s" % (acc, wf(i), af(j), acc))
                    else: mf.append("v_mfma_f32_32x32x16_bf16 %s, %s, %s, %s" % (acc, af(i), wf(j), acc))
            a(mf[0]); a(mf[1])
            a("s_cmp_lt_i32 s51, 6")
            a("s_cbranch_scc1 %s_s%d" % (L, b))
            for l in loads((b + NR - 1) % NR): a(l)
            a.label("%s_s%d" % (L, b))
            a(mf[2]); a(mf[3])
            a("s_sub_u32 s51, s51, 1")
            a("s_cmp_lt_i32 s51, -1")
            if b < NR - 1: a("s_cbranch_scc1 K3_red")
            else:
                a("s_cbranch_scc0 %s" % L)
                a("s_branch K3_red")
        for b in range(NR):
            a.label("%s_t%d" % (L, b))
            a("s_cmp_lt_i32 s51, 2")
            a("s_cbranch_scc1 %s_u%d" % (L, b))
            a("s_waitcnt vmcnt(8)")
            a("s_branch %s_r%d" % (L, b))
            a.label("%s_u%d" % (L, b))
            a("s_waitcnt vmcnt(0)")
            a("s_branch %s_r%d" % (L, b))
    a.label("K3_red")
    stamp(a, 2)
    srd(a, 24, 12, WS_USED)
    srd(a, 28, 10, 4096)
    srd(a, 44, 14, 2048 * 1024)
    a("s_lshl_b32 s52, s36, 6")
    a("s_lshl_b32 s53, s33, 4")
    a("s_add_u32 s52, s52, s53")
    a("s_lshl_b32 s53, s52, 2")
    a("s_add_u32 s53, s53, %d" % GW)
    a("s_lshl_b32 s54, s52, 1")
    a("v_lshlrev_b32 v4, 2, v3")
    a("v_lshlrev_b32 v5, 1, v3")
    a("buffer_load_dword v12, v4, s[24:27], s53 offen")
    a("buffer_load_dword v13, v4, s[24:27], s53 offen offset:32")
    a("buffer_load_ushort v14, v5, s[28:31], s54 offen")
    a("buffer_load_ushort v15, v5, s[28:31], s54 offen offset:16")
    RST = 272; WB = 64 * RST
    a("v_and_b32 v6, 31, v1")
    a("v_mul_u32_u24 v6, %d, v6" % RST)
    a("v_lshl_add_u32 v6, v7, 4, v6")
    a("s_mul_i32 s55, s33, %d" % WB)
    a("s_add_u32 s55, s55, 65536")
    a("v_add_u32 v6, s55, v6")
    for i in range(2):
        for j in range(2):
            for g in range(4):
                a("ds_write_b128 v6, %s offset:%d" % (vr(ACC + (i * 2 + j) * 16 + 4 * g, 4), j * 32 * RST + i * 128 + g * 32))
    a("s_lshl_b32 s55, s33, 4")
    a("v_add_u32 v6, s55, v3")
    a("v_mul_u32_u24 v6, %d, v6" % RST)
    a("v_and_b32 v8, 7, v1")
    a("v_lshl_add_u32 v6, v8, 5, v6")
    a("v_add_u32 v6, 65536, v6")
    a("v_lshlrev_b32 v8, 4, v8")
    a("v_lshl_add_u32 v8, v3, 10, v8")
    a("s_lshl_b32 s55, s52, 10")
    a("s_lshl_b32 s56, s37, 7")
    a("s_add_u32 s55, s55, s56")
    a("s_add_u32 s56, s55, 8192")
    a("s_waitcnt lgkmcnt(0)")
    a("s_barrier")
    stamp(a, 3)
    R = 80
    for ps in range(2):
        for wv in range(4):
            for hh in range(2):
                a("ds_read_b128 %s, v6 offset:%d" % (vr(R + 32 * ps + 8 * wv + 4 * hh, 4), wv * WB + ps * 8 * RST + hh * 16))
    a("s_waitcnt vmcnt(0)")
    for ps in range(2):
        g = 12 + ps; b2 = 14 + ps
        a("v_lshlrev_b32 v%d, 16, v%d" % (150 + 6 * ps + 4, b2))
        a("v_sub_f32 v%d, 1.0, v%d" % (150 + 6 * ps, g))
        a("v_cvt_pk_bf16_f32 v%d, v%d, v%d" % (150 + 6 * ps, 150 + 6 * ps, 150 + 6 * ps))
        a("v_lshlrev_b32 v%d, 16, v%d" % (150 + 6 * ps, 150 + 6 * ps))
        a("v_mov_b32 v%d, v%d" % (150 + 6 * ps + 2, g))
    for ps in range(2):
        r = R + 32 * ps; c = 150 + 6 * ps
        a("s_waitcnt lgkmcnt(%d)" % (8 - 8 * ps))
        for k in range(4):
            a("v_pk_add_f32 %s, %s, %s" % (vr(r + 8 + 2 * k, 2), vr(r + 8 + 2 * k, 2), vr(r + 16 + 2 * k, 2)))
        for k in range(4):
            a("v_pk_add_f32 %s, %s, %s op_sel_hi:[1,0]" % (vr(r + 24 + 2 * k, 2), vr(r + 24 + 2 * k, 2), vr(c + 4, 2)))
        for k in range(4):
            a("v_pk_mul_f32 %s, %s, %s op_sel_hi:[1,0]" % (vr(r + 2 * k, 2), vr(r + 2 * k, 2), vr(c + 2, 2)))
        for k in range(4):
            a("v_pk_add_f32 %s, %s, %s" % (vr(r + 8 + 2 * k, 2), vr(r + 8 + 2 * k, 2), vr(r + 24 + 2 * k, 2)))
        for k in range(4):
            a("v_pk_fma_f32 %s, %s, %s, %s op_sel_hi:[1,0,1]" % (vr(r + 2 * k, 2), vr(r + 8 + 2 * k, 2), vr(c, 2), vr(r + 2 * k, 2)))
        for k in range(4): a("v_cvt_pk_bf16_f32 v%d, v%d, v%d" % (r + 16 + k, r + 2 * k, r + 2 * k + 1))
        a("buffer_store_dwordx4 %s, v8, s[44:47], s%d offen" % (vr(r + 16, 4), 55 + ps))
    stamp(a, 4)
    stamp_flush(a, 2, 12)
    a.label("K3_end")
    a("s_endpgm")
    return a.text(), 162

HEADER = open("gated_mix__sliding_block__mixer_token_mlp__prompt.s.ref").read().split("; Override launch")[0]

def build(kernels):
    s = HEADER
    for name, grid, block, lds, _ in kernels:
        s += "; @launch kernel=%s grid=(%d,1,1) block=(%d,1,1) lds=%d\n" % (name, grid, block, lds)
    s += '.amdgcn_target "amdgcn-amd-amdhsa--gfx950"\n.text\n'
    descs = ""
    for name, grid, block, lds, fn in kernels:
        body, vg = fn()
        s += kernel_header(name) + body
        descs += kernel_desc(name, vg)
    s += '.section .rodata,"a"\n' + descs
    if os.environ.get("ALLSC1", "1") == "1":
        out = []
        for l in s.split("\n"):
            if "buffer_store_" in l and "sc1" not in l: l = l.rstrip() + " sc1"
            out.append(l)
        s = "\n".join(out)
    return s

if __name__ == "__main__":
    ks = [("k1_kernel", 256, 512, 2 * K1W, gen_k1), ("k2_kernel", 256, 512, MOFF + 4 * NRM * 4096, gen_k2), ("k3_kernel", 256, 256, 65536 + 69632, gen_k3)]
    LIST = os.environ.get("LIST", "")
    out = sys.argv[1] if len(sys.argv) > 1 else "out.s"
    if len(sys.argv) > 2 and sys.argv[2] == "stamps": STAMPS = True
    txt = build(ks)
    if LIST:
        lines = txt.split("\n")
        ll = [l for l in lines if l.startswith("; @launch")]
        i0 = lines.index(ll[0])
        lines = lines[:i0] + [ll[int(c)] for c in LIST] + lines[i0 + len(ll):]
        txt = "\n".join(lines)
    open(out, "w").write(txt)
```

```python
import sys, struct, os
from asmlib import *

QF = 0
KF = 2 << 20
VF = 4 << 20
HT = 6 << 20
W1O = 8 << 20
GW = 14 << 20
OF = 15 << 20
UF = 17 << 20
WS_USED = 19 << 20
BIG = 0x40000000

STAMPS = False
EXP = set(os.environ.get("EXP", "").split(","))
AUXPOL = os.environ.get("AUXPOL", "")
QKVPOL = os.environ.get("QKVPOL", "")
K2POL = os.environ.get("K2POL", "")
PRIO = os.environ.get("PRIO", "")
TS = 24 << 20
def f32(x): return "0x%08x" % struct.unpack("<I", struct.pack("<f", x))[0]
QSCALE = 0.25 * 1.4426950408889634
GC1 = -2.0 * 0.7978845608028654 * 1.4426950408889634
GC2 = GC1 * 0.044715
NEGBIG = -1.0e30

def stamp(a, n):
    if STAMPS: a("s_memrealtime s[%d:%d]" % (70 + 2 * n, 71 + 2 * n))
def stamp_flush(a, kidx, wsptr, nst=6):
    if not STAMPS: return
    a("s_waitcnt vmcnt(0)")
    stamp(a, nst - 1)
    a("s_memtime s[92:93]")
    a("s_mov_b32 s84, s%d" % wsptr)
    a("s_and_b32 s85, s%d, 0xffff" % (wsptr + 1))
    a("s_mov_b32 s86, 0x%x" % (32 << 20))
    a("s_mov_b32 s87, 0x00020000")
    a("v_lshrrev_b32 v0, 6, v0")
    a("s_lshl_b32 s88, s2, 4")
    a("v_add_u32 v0, s88, v0")
    a("v_lshlrev_b32 v0, 5, v0")
    a("s_waitcnt lgkmcnt(0)")
    a("s_mov_b32 s88, %d" % (TS + (kidx << 20)))
    for i in range(nst):
        a("v_mov_b32 v1, s%d" % (70 + 2 * i))
        a("buffer_store_dword v1, v0, s[84:87], s88 offen offset:%d" % (4 * i))
        a("s_nop 1")
    a("s_sub_u32 s92, s92, s90")
    a("v_mov_b32 v1, s92")
    a("buffer_store_dword v1, v0, s[84:87], s88 offen offset:24")
def stamps_init(a):
    if STAMPS:
        for i in range(1, 5): a("s_mov_b64 s[%d:%d], 0" % (70 + 2 * i, 71 + 2 * i))
        stamp(a, 0)
        a("s_memtime s[90:91]")

def srd(a, d, base, nrec):
    a("s_mov_b32 s%d, s%d" % (d, base))
    a("s_and_b32 s%d, s%d, 0xffff" % (d + 1, base + 1))
    a("s_mov_b32 s%d, %s" % (d + 2, nrec if isinstance(nrec, str) else "0x%x" % nrec))
    a("s_mov_b32 s%d, 0x00020000" % (d + 3))
def srd_off(a, d, base, soff, nrec):
    a("s_add_u32 s%d, s%d, s%d" % (d, base, soff))
    a("s_addc_u32 s%d, s%d, 0" % (d + 1, base + 1))
    a("s_and_b32 s%d, s%d, 0xffff" % (d + 1, d + 1))
    a("s_mov_b32 s%d, %s" % (d + 2, nrec if isinstance(nrec, str) else "0x%x" % nrec))
    a("s_mov_b32 s%d, 0x00020000" % (d + 3))

K1W = 5 * 16384
def gen_k1():
    a = Asm()
    a("s_cmp_ge_u32 s2, 256")
    a("s_cbranch_scc1 K1_end")
    stamps_init(a)
    a("s_load_dwordx4 s[4:7], s[0:1], 0")
    a("s_load_dwordx2 s[8:9], s[0:1], 32")
    a("s_load_dwordx2 s[10:11], s[0:1], 64")
    a("s_load_dwordx2 s[12:13], s[0:1], 88")
    a("v_and_b32 v1, 63, v0")
    a("v_lshrrev_b32 v2, 6, v0")
    a("s_and_b32 s34, s2, 7")
    a("v_readfirstlane_b32 s33, v2")
    a("s_lshr_b32 s35, s2, 3")
    if "scramble" in EXP:
        a("s_add_u32 s34, s34, s35")
        a("s_and_b32 s34, s34, 7")
    a("s_cmp_ge_u32 s35, 24")
    a("s_cbranch_scc1 K1_aux")
    a("s_mul_i32 s36, s35, 43")
    a("s_lshr_b32 s36, s36, 8")
    a("s_mul_i32 s37, s36, 6")
    a("s_sub_u32 s37, s35, s37")
    a("s_lshr_b32 s38, s34, 1")
    a("s_lshl_b32 s38, s38, 2")
    a("s_add_u32 s38, s38, s36")
    a("s_lshr_b32 s39, s37, 1")
    a("s_and_b32 s40, s34, 1")
    a("s_lshl_b32 s40, s40, 1")
    a("s_and_b32 s41, s37, 1")
    a("s_add_u32 s40, s40, s41")
    a("s_cmp_lt_u32 s33, 4")
    a("s_cbranch_scc1 K1_cons")
    a("s_sub_u32 s33, s33, 4")
    a("s_lshl_b32 s41, s39, 9")
    a("s_lshl_b32 s42, s40, 7")
    a("s_add_u32 s41, s41, s42")
    a("s_and_b32 s42, s33, 1")
    a("s_lshl_b32 s42, s42, 2")
    a("v_lshrrev_b32 v3, 4, v1")
    a("v_add_u32 v4, s42, v3")
    a("v_and_b32 v5, 7, v1")
    a("v_xor_b32 v4, v4, v5")
    a("v_lshrrev_b32 v5, 3, v1")
    a("v_lshlrev_b32 v5, 10, v5")
    a("v_lshl_add_u32 v10, v4, 4, v5")
    a("v_lshlrev_b32 v4, 2, v3")
    a("v_and_b32 v5, 15, v1")
    a("v_xor_b32 v4, v4, v5")
    a("v_mul_u32_u24 v5, 3072, v3")
    a("v_lshl_add_u32 v11, v4, 4, v5")
    a("s_lshl_b32 s46, s38, 7")
    a("s_lshl_b32 s44, s33, 3")
    a("s_add_u32 s46, s46, s44")
    a("s_lshl_b32 s46, s46, 10")
    a("s_mul_i32 s47, s33, 12288")
    a("s_lshl_b32 s45, s41, 1")
    a("s_add_u32 s47, s47, s45")
    a("s_lshl_b32 s48, s33, 10")
    if "norot1" in EXP:
        a("s_mov_b32 s57, 0")
    else:
        a("s_lshl_b32 s57, s36, 1")
        a("s_add_u32 s57, s57, s37")
        a("s_and_b32 s57, s57, 7")
    a("s_waitcnt lgkmcnt(0)")
    srd(a, 16, 4, 2048 * 1024)
    srd(a, 20, 6, 512 * 3072)
    stamp(a, 1)
    def issue():
        a("s_lshl_b32 s58, s57, 7")
        a("s_add_u32 s58, s58, s46")
        a("s_mul_i32 s59, s57, 196608")
        a("s_add_u32 s59, s59, s47")
        for u in range(4):
            a("s_add_u32 m0, s48, %d" % (u * 4096))
            a("s_add_u32 s50, s58, %d" % (u * 32768))
            a("buffer_load_dwordx4 v10, s[16:19], s50 offen lds")
            a("s_add_u32 m0, s48, %d" % (K1W + u * 4096))
            a("s_add_u32 s50, s59, %d" % (u * 49152))
            a("buffer_load_dwordx4 v11, s[20:23], s50 offen lds")
        a("s_add_u32 s57, s57, 1")
        a("s_and_b32 s57, s57, 7")
        a("s_add_u32 s48, s48, 16384")
        a("s_cmp_ge_u32 s48, %d" % K1W)
        a("s_cselect_b32 s48, s60, s48")
    a("s_mov_b32 s49, 0")
    a("s_mov_b32 s60, s48")
    a.label("K1_ld")
    issue()
    a("s_add_u32 s49, s49, 1")
    a("s_cmp_lt_u32 s49, 3")
    a("s_cbranch_scc1 K1_ld")
    a("s_cmp_eq_u32 s49, 4")
    a("s_cbranch_scc1 K1_ld")
    a("s_cmp_eq_u32 s49, 5")
    a("s_cbranch_scc0 K1_ld2")
    a("s_waitcnt vmcnt(24)")
    a("s_barrier")
    a.label("K1_ld2")
    a("s_waitcnt vmcnt(16)")
    a("s_barrier")
    a("s_cmp_lt_u32 s49, 8")
    a("s_cbranch_scc1 K1_ld")
    stamp(a, 3)
    a("s_waitcnt vmcnt(8)")
    a("s_barrier")
    a("s_waitcnt vmcnt(0)")
    a("s_barrier")
    stamp_flush(a, 0, 12)
    a("s_endpgm")
    a.label("K1_cons")
    a("s_lshr_b32 s51, s33, 1")
    a("s_and_b32 s52, s33, 1")
    a("v_bfe_u32 v3, v1, 1, 3")
    a("v_lshrrev_b32 v4, 5, v1")
    a("v_xor_b32 v5, v3, v4")
    a("v_and_b32 v6, 31, v1")
    a("s_lshl_b32 s53, s51, 13")
    a("v_lshl_add_u32 v6, v6, 7, s53")
    for ks in range(4):
        a("v_xor_b32 v7, %d, v5" % (2 * ks))
        a("v_lshl_add_u32 v%d, v7, 4, v6" % (12 + ks))
    a("v_bfe_u32 v3, v1, 2, 2")
    a("v_lshl_add_u32 v5, v4, 3, v3")
    a("v_lshlrev_b32 v5, 8, v5")
    a("s_lshl_b32 s53, s52, 1")
    a("v_xor_b32 v6, s53, v3")
    a("v_lshl_add_u32 v5, v6, 6, v5")
    a("v_bfe_u32 v6, v1, 4, 1")
    a("v_lshl_add_u32 v5, v6, 5, v5")
    a("v_and_b32 v6, 3, v1")
    a("v_lshl_add_u32 v5, v6, 3, v5")
    a("v_add_u32 v16, %d, v5" % K1W)
    a("v_xor_b32 v17, 64, v16")
    for i in range(6): a("v_mov_b32 v%d, v%d" % (20 + i, 12 + i))
    ACC = 96
    for i in range(0, 64, 2): a("v_mov_b64 %s, 0" % vr(ACC + i, 2))
    XFR = 32
    def reads(ks, b):
        r = []
        if "k1noread" in EXP: return ["s_nop 0"]
        for t in range(2):
            r.append("ds_read_b128 %s, v%d offset:%d" % (vr(XFR + b * 16 + t * 4, 4), 20 + ks, t * 4096))
        for mt in range(2):
            for rd in range(2):
                r.append("ds_read_b64_tr_b16 %s, v%d offset:%d" % (vr(XFR + b * 16 + 8 + mt * 4 + rd * 2, 2), 24 + mt, ks * 4096 + rd * 1024))
        return r
    def mfmas(b, vtype):
        r = []
        if "k1nomfma" in EXP: return ["s_nop 0"]
        for i in range(2):
            for j in range(2):
                acc = vr(ACC + (i * 2 + j) * 16, 16)
                xf = lambda t: vr(XFR + b * 16 + t * 4, 4)
                wf = lambda t: vr(XFR + b * 16 + 8 + t * 4, 4)
                if vtype: r.append("v_mfma_f32_32x32x16_bf16 %s, %s, %s, %s" % (acc, xf(i), wf(j), acc))
                else: r.append("v_mfma_f32_32x32x16_bf16 %s, %s, %s, %s" % (acc, wf(i), xf(j), acc))
        return r
    a("s_lshl_b32 s53, s40, 3")
    a("s_lshl_b32 s54, s52, 2")
    a("s_add_u32 s53, s53, s54")
    a("s_lshl_b32 s53, s53, 16")
    a("s_lshl_b32 s54, s38, 2")
    a("s_lshl_b32 s55, s51, 1")
    a("s_add_u32 s54, s54, s55")
    a("s_lshl_b32 s54, s54, 10")
    a("s_add_u32 s53, s53, s54")
    a("s_lshl_b32 s54, s39, 21")
    a("s_add_u32 s53, s53, s54")
    a("s_cmp_eq_u32 s39, 0")
    a("s_cselect_b32 s56, %s, 1.0" % f32(QSCALE))
    a("s_mov_b32 s49, 0")
    a("s_mov_b32 s54, 0")
    a("s_waitcnt lgkmcnt(0)")
    srd(a, 24, 12, WS_USED)
    stamp(a, 1)
    a("s_barrier")
    stamp(a, 2)
    for r in reads(0, 0): a(r)
    for r in reads(1, 1): a(r)
    a("s_cmp_eq_u32 s39, 2")
    a("s_cbranch_scc1 K1_loop_v")
    for vtype in (0, 1):
        L = "K1_loop_v" if vtype else "K1_loop_qk"
        a.label(L)
        for ks in range(4):
            if ks == 2:
                a("s_add_u32 s54, s54, 16384")
                a("s_cmp_ge_u32 s54, %d" % K1W)
                a("s_cselect_b32 s54, 0, s54")
                for i in range(6): a("v_add_u32 v%d, s54, v%d" % (20 + i, 12 + i))
                a("s_cmp_eq_u32 s49, 7")
                a("s_cbranch_scc1 %s_nb" % L)
                a("s_barrier")
                a.label(L + "_nb")
            a("s_waitcnt lgkmcnt(6)")
            rd = reads((ks + 2) % 4, (ks + 2) % 4)
            mf = mfmas(ks, vtype)
            for n in range(len(mf)):
                a(mf[n])
                for r in rd[2 * n:2 * n + 2]: a(r)
        a("s_add_u32 s49, s49, 1")
        a("s_cmp_lt_u32 s49, 8")
        a("s_cbranch_scc1 %s" % L)
        a("s_waitcnt lgkmcnt(0)")
        stamp(a, 3)
        if not vtype:
            a("v_lshlrev_b32 v3, 4, v1")
        else:
            a("v_bfe_u32 v3, v1, 4, 1")
            a("v_lshlrev_b32 v3, 16, v3")
            a("v_lshrrev_b32 v4, 5, v1")
            a("v_lshl_add_u32 v3, v4, 8, v3")
            a("v_and_b32 v4, 15, v1")
            a("v_lshl_add_u32 v3, v4, 4, v3")
        a("s_nop 7")
        for i in range(2):
            for j in range(2):
                base = ACC + (i * 2 + j) * 16
                if i == 1 and j == 1: a("s_nop 3")
                for half in range(2):
                    t = 32 + ((i * 4 + j * 2 + half) % 4) * 4
                    for k in range(4):
                        r0 = base + half * 8 + 2 * k
                        if not vtype:
                            a("v_pk_mul_f32 %s, %s, s[56:57] op_sel_hi:[1,0]" % (vr(r0, 2), vr(r0, 2)))
                        a("v_cvt_pk_bf16_f32 v%d, v%d, v%d" % (t + k, r0, r0 + 1))
                    if not vtype:
                        a("s_add_u32 s54, s53, %d" % ((2 * i + half) * 65536))
                        a("buffer_store_dwordx4 %s, v3, s[24:27], s54 offen offset:%d %s" % (vr(t, 4), j * 1024, QKVPOL))
                    else:
                        a("s_add_u32 s54, s53, %d" % (2 * j * 65536))
                        a("buffer_store_dwordx4 %s, v3, s[24:27], s54 offen offset:%d %s" % (vr(t, 4), i * 1024 + half * 512, QKVPOL))
        stamp_flush(a, 0, 12)
        a("s_endpgm")
    a.label("K1_aux")
    RS = 1040
    a("s_sub_u32 s36, s35, 24")
    a("s_lshl_b32 s37, s34, 3")
    a("s_add_u32 s36, s36, s37")
    a("v_lshrrev_b32 v3, 4, v1")
    a("v_and_b32 v4, 15, v1")
    a("v_lshlrev_b32 v5, 4, v4")
    a("v_lshl_add_u32 v6, v3, 10, v5")
    a("v_lshlrev_b32 v7, 4, v1")
    a("s_lshl_b32 s37, s36, 15")
    a("s_lshl_b32 s38, s33, 12")
    a("s_add_u32 s37, s37, s38")
    a("s_waitcnt lgkmcnt(0)")
    srd(a, 16, 4, 2048 * 1024)
    srd(a, 28, 10, 1024)
    XR = 32; GR = 48; D0 = 64; CP = 96
    for t in range(4):
        a("buffer_load_dwordx4 %s, v6, s[16:19], s37 offen offset:%d" % (vr(XR + 4 * t, 4), t * 256))
    for t in range(4):
        a("buffer_load_dwordx4 %s, v5, s[28:31], 0 offen offset:%d" % (vr(GR + 4 * t, 4), t * 256))
    stamp(a, 1)
    srd(a, 20, 8, 2048 * 2752)
    srd(a, 24, 12, WS_USED)
    a("s_lshl_b32 s43, s36, 4")
    a("s_lshl_b32 s44, s33, 1")
    a("s_add_u32 s43, s43, s44")
    a("s_mul_i32 s44, s43, 5504")
    a("s_add_u32 s44, s44, 2752")
    a("s_add_u32 s45, s44, 5504")
    a("s_mul_i32 s46, s43, 2816")
    a("s_add_u32 s46, s46, %d" % W1O)
    a("s_add_u32 s47, s46, 2816")
    a("s_mul_i32 s38, s34, 640")
    a("s_sub_u32 s39, s34, 4")
    a("s_mul_i32 s39, s39, 768")
    a("s_cmp_lt_u32 s34, 4")
    a("s_cselect_b32 s38, s38, s39")
    a("s_movk_i32 s39, 640")
    a("s_cselect_b32 s39, 512, s39")
    a("s_cmp_eq_u32 s34, 7")
    a("s_cselect_b32 s39, 384, s39")
    a("v_and_b32 v28, 7, v1")
    a("v_lshlrev_b32 v28, 7, v28")
    a("v_min_u32 v28, s39, v28")
    a("v_lshrrev_b32 v9, 3, v1")
    a("v_mul_u32_u24 v9, 5504, v9")
    a("v_add_u32 v28, v28, v9")
    a("s_sub_u32 s40, s35, 24")
    a("s_lshl_b32 s40, s40, 3")
    a("s_add_u32 s40, s40, s33")
    a("s_mul_i32 s40, s40, %d" % (8 * 5504))
    a("s_add_u32 s38, s38, s40")
    a("v_bfe_u32 v29, v1, 2, 2")
    a("v_lshl_add_u32 v29, v3, 2, v29")
    a("v_and_b32 v30, 3, v1")
    a("v_lshlrev_b32 v30, 3, v30")
    a("v_mul_u32_u24 v29, %d, v29" % (2 * RS))
    a("v_add_u32 v29, v29, v30")
    a("s_lshl_b32 s41, s33, 7")
    a("v_add_u32 v29, s41, v29")
    a("s_lshl_b32 s40, s36, 15")
    a("s_lshl_b32 s41, s33, 12")
    a("s_add_u32 s40, s40, s41")
    a("s_add_u32 s40, s40, %d" % HT)
    a("s_lshl_b32 s42, s36, 7")
    a("s_lshl_b32 s41, s33, 4")
    a("s_add_u32 s42, s42, s41")
    a("s_add_u32 s42, s42, %d" % GW)
    a("s_lshl_b32 s41, s33, 2")
    a("v_add_u32 v9, s41, v3")
    a("v_mul_u32_u24 v9, %d, v9" % RS)
    a("v_add_u32 v9, v9, v5")
    a("v_lshlrev_b32 v30, 2, v3")
    a("v_mov_b32 v8, 0x3f803f80")
    a("v_mov_b64 v[10:11], 0")
    a("v_mov_b64 v[12:13], 0")
    def w1loads():
        for r in range(2):
            for t in range(3):
                a("buffer_load_dwordx4 %s, v7, s[20:23], s%d offen offset:%d" % (vr(CP + 12 * r + 4 * t, 4), 44 + r, t * 1024))
    if "w1early" in EXP: w1loads()
    a("s_waitcnt vmcnt(%d)" % (6 if "w1early" in EXP else 0))
    stamp(a, 2)
    if "w1early" not in EXP: w1loads()
    for i in range(16):
        a("v_dot2c_f32_bf16 v%d, v%d, v8" % (10 + (i & 1), XR + i))
        a("v_dot2c_f32_bf16 v%d, v%d, v%d" % (12 + (i & 1), XR + i, GR + i))
    for i in range(16):
        a("v_lshlrev_b32 v%d, 16, v%d" % (D0 + 2 * i, XR + i))
        a("v_and_b32 v%d, 0xffff0000, v%d" % (D0 + 2 * i + 1, XR + i))
    a("v_add_f32 v10, v10, v11")
    a("v_add_f32 v12, v12, v13")
    def red(regs):
        for pat in ("quad_perm:[1,0,3,2]", "quad_perm:[2,3,0,1]", "row_half_mirror", "row_mirror"):
            a("s_nop 1")
            for r in regs:
                a("v_add_f32_dpp v%d, v%d, v%d %s row_mask:0xf bank_mask:0xf" % (r, r, r, pat))
    red([10, 12])
    a("v_mul_f32 v14, %s, v10" % f32(1.0 / 512))
    a("v_mov_b64 v[16:17], 0")
    a("v_mov_b64 v[18:19], 0")
    for i in range(16):
        p = vr(D0 + 2 * i, 2)
        a("v_pk_add_f32 %s, %s, v[14:15] op_sel_hi:[1,0] neg_lo:[0,1] neg_hi:[0,1]" % (p, p))
    for i in range(16):
        p = vr(D0 + 2 * i, 2); ac = vr(16 + 2 * (i & 1), 2)
        a("v_pk_fma_f32 %s, %s, %s, %s" % (ac, p, p, ac))
    a("v_add_f32 v16, v16, v17")
    a("v_add_f32 v18, v18, v19")
    a("v_add_f32 v16, v16, v18")
    red([16])
    a("v_mul_f32 v16, %s, v16" % f32(1.0 / 512))
    a("v_cvt_pk_bf16_f32 v16, v16, v14")
    a("v_cvt_pk_bf16_f32 v12, v12, v12")
    a("v_and_b32 v17, 0xffff0000, v16")
    a("v_lshlrev_b32 v16, 16, v16")
    a("v_lshlrev_b32 v12, 16, v12")
    a("v_add_f32 v16, %s, v16" % f32(1e-5))
    a("v_mul_f32 v12, %s, v12" % f32(-1.4426950408889634))
    a("v_cvt_pk_bf16_f32 v16, v16, v16")
    a("v_exp_f32 v12, v12")
    a("v_lshlrev_b32 v16, 16, v16")
    a("v_sqrt_f32 v16, v16")
    a("v_add_f32 v12, 1.0, v12")
    a("v_cvt_pk_bf16_f32 v16, v16, v16")
    a("v_rcp_f32 v12, v12")
    a("v_lshlrev_b32 v16, 16, v16")
    a("v_rcp_f32 v20, v16")
    a("v_sub_f32 v18, v14, v17")
    a("v_cvt_pk_bf16_f32 v12, v12, v12")
    a("v_mul_f32 v22, v18, v20")
    a("v_lshlrev_b32 v12, 16, v12")
    for t in range(4):
        for k in range(4):
            p = vr(D0 + 2 * (4 * t + k), 2)
            a("v_pk_fma_f32 %s, %s, v[20:21], v[22:23] op_sel_hi:[1,0,0]" % (p, p))
        for k in range(4):
            i = 4 * t + k
            a("v_cvt_pk_bf16_f32 v%d, v%d, v%d" % (XR + i, D0 + 2 * i, D0 + 2 * i + 1))
        a("ds_write_b128 v9, %s offset:%d" % (vr(XR + 4 * t, 4), t * 256))
    a("buffer_store_dword v12, v30, s[24:27], s42 offen")
    a("s_waitcnt lgkmcnt(0)")
    stamp(a, 3)
    a("s_barrier")
    for d in range(4):
        for rd in range(2):
            a("ds_read_b64_tr_b16 %s, v29 offset:%d" % (vr(32 + 4 * d + 2 * rd, 2), 32 * d + rd * RS))
    for d in range(4):
        a("s_waitcnt lgkmcnt(%d)" % (6 - 2 * d))
        a("buffer_store_dwordx4 %s, v7, s[24:27], s40 offen offset:%d %s" % (vr(32 + 4 * d, 4), d * 1024, AUXPOL))
    NT = 0 if "now1pf" in EXP else 2
    for t in range(NT):
        a("buffer_load_dword v%d, v28, s[20:23], s38 offen" % (24 + t))
        a("s_add_u32 s38, s38, %d" % (512 * 5504))
    a("s_mov_b32 s48, -1")
    a("s_mov_b32 s49, 0xffff")
    a("s_waitcnt vmcnt(%d)" % (NT + 5))
    stamp(a, 4)
    for r in range(2):
        for t in range(3):
            if t == 2: a("s_mov_b64 exec, s[48:49]")
            a("buffer_store_dwordx4 %s, v7, s[24:27], s%d offen offset:%d %s" % (vr(CP + 12 * r + 4 * t, 4), 46 + r, t * 1024, AUXPOL))
            if t == 2: a("s_mov_b64 exec, -1")
    stamp_flush(a, 0, 12)
    a.label("K1_end")
    a("s_endpgm")
    return a.text(), 160

NRM = 6; MOFF = 33792; CNT = 33280
def lds_sync(a, idx, name, vt):
    a("v_mov_b32 v%d, %d" % (vt, CNT + 4 * idx))
    a("v_mov_b32 v%d, 1" % (vt + 1))
    a("s_mov_b64 exec, 1")
    a("ds_add_u32 v%d, v%d" % (vt, vt + 1))
    a("s_mov_b64 exec, -1")
    a.label(name)
    a("ds_read_b32 v%d, v%d" % (vt + 1, vt))
    a("s_waitcnt lgkmcnt(0)")
    a("v_readfirstlane_b32 s68, v%d" % (vt + 1))
    a("s_cmp_ge_u32 s68, 4")
    a("s_cbranch_scc0 %s" % name)
def gen_k2():
    a = Asm()
    a("s_cmp_ge_u32 s2, 256")
    a("s_cbranch_scc1 K2_end")
    stamps_init(a)
    a("s_load_dwordx4 s[8:11], s[0:1], 32")
    a("s_load_dwordx2 s[12:13], s[0:1], 88")
    a("s_load_dwordx2 s[4:5], s[0:1], 16")
    a("s_load_dwordx2 s[6:7], s[0:1], 48")
    a("v_and_b32 v1, 63, v0")
    a("v_lshrrev_b32 v2, 6, v0")
    a("s_and_b32 s34, s2, 7")
    a("v_readfirstlane_b32 s33, v2")
    a("s_lshr_b32 s35, s2, 3")
    if "scramble" in EXP:
        a("s_add_u32 s34, s34, s35")
        a("s_and_b32 s34, s34, 7")
    a("v_lshlrev_b32 v2, 4, v1")
    a("v_mov_b32 v3, %d" % CNT)
    a("v_mov_b64 v[4:5], 0")
    a("ds_write_b64 v3, v[4:5]")
    a("ds_write_b64 v3, v[4:5] offset:8")
    a("s_waitcnt lgkmcnt(0)")
    a("s_barrier")
    a("s_cmp_lt_u32 s33, 4")
    a("s_cbranch_scc1 K2_attn")
    a("s_sub_u32 s33, s33, 4")
    a("s_cmp_eq_u32 s34, 7")
    a("s_cbranch_scc1 K2_d7")
    a("s_cmp_ge_u32 s35, 30")
    a("s_cbranch_scc1 K2_pref")
    a("s_cmp_lt_u32 s34, 4")
    a("s_cbranch_scc0 K2_d5")
    a("s_mul_i32 s36, s34, 5")
    a("s_mov_b32 s37, s35")
    a.label("K2_d6")
    a("s_mul_i32 s38, s37, 43")
    a("s_lshr_b32 s38, s38, 8")
    a("s_mul_i32 s39, s38, 6")
    a("s_sub_u32 s39, s37, s39")
    a("s_add_u32 s38, s38, s36")
    a("s_branch K2_dd")
    a.label("K2_d7")
    a("s_mov_b32 s36, 20")
    a("s_sub_u32 s37, s35, 20")
    a("s_cmp_ge_u32 s35, 20")
    a("s_cbranch_scc1 K2_d6")
    a.label("K2_d5")
    a("s_sub_u32 s36, s34, 4")
    a("s_mul_i32 s36, s36, 6")
    a("s_mul_i32 s38, s35, 52")
    a("s_lshr_b32 s38, s38, 8")
    a("s_mul_i32 s39, s38, 5")
    a("s_sub_u32 s39, s35, s39")
    a("s_add_u32 s39, s39, 6")
    a("s_add_u32 s38, s38, s36")
    a.label("K2_dd")

    a("v_lshrrev_b32 v3, 3, v1")
    a("v_mul_u32_u24 v153, 2816, v3")
    a("v_mul_u32_u24 v3, 5504, v3")
    a("v_lshrrev_b32 v4, 4, v1")
    a("v_lshlrev_b32 v4, 1, v4")
    a("v_and_b32 v5, 7, v1")
    a("v_xor_b32 v4, v4, v5")
    a("v_lshl_add_u32 v3, v4, 4, v3")
    a("v_lshl_add_u32 v153, v4, 4, v153")
    a("s_mul_i32 s54, s33, %d" % (256 * 5504))
    a("s_lshl_b32 s40, s38, 7")
    a("s_add_u32 s54, s54, s40")
    a("s_mul_i32 s53, s33, %d" % (256 * 2816))
    a("s_add_u32 s53, s53, s40")
    a("s_add_u32 s53, s53, %d" % W1O)
    a("s_lshl_b32 s55, s33, 19")
    a("s_mul_i32 s40, s39, 3072")
    a("s_add_u32 s55, s55, s40")
    a("s_add_u32 s55, s55, %d" % HT)
    a("s_mul_i32 s40, s33, %d" % (NRM * 4096))
    a("s_add_u32 s40, s40, %d" % MOFF)
    if "norot2" not in EXP:
        a("s_mov_b32 s58, s54")
        a("s_mov_b32 s59, s55")
        a("s_mov_b32 s60, s53")
        a("s_add_u32 s57, s55, %d" % (16 * 32768))
        a("s_mul_i32 s41, s38, 3")
        a("s_mul_i32 s42, s39, 5")
        a("s_add_u32 s41, s41, s42")
        a("s_and_b32 s41, s41, 15")
        a("s_mul_i32 s42, s41, %d" % (16 * 5504))
        a("s_add_u32 s54, s54, s42")
        a("s_mul_i32 s42, s41, %d" % (16 * 2816))
        a("s_add_u32 s53, s53, s42")
        a("s_lshl_b32 s42, s41, 15")
        a("s_add_u32 s55, s55, s42")
    a("s_waitcnt lgkmcnt(0)")
    srd(a, 16, 8, 2048 * 2752)
    srd(a, 24, 12, WS_USED)
    ACC = 8; AF = 56; BF = 160
    def loads(b):
        r = []
        for q in range(4):
            r.append("s_add_u32 m0, s40, %d" % (b * 4096 + q * 1024))
            if q < 2:
                r.append("s_add_u32 s50, s54, %d" % (q * 8 * 5504))
                r.append("buffer_load_dwordx4 v3, s[16:19], s50 offen lds")
            else:
                r.append("s_add_u32 s50, s53, %d" % ((q - 2) * 8 * 2816))
                r.append("buffer_load_dwordx4 v153, s[24:27], s50 offen lds")
        for i in range(3):
            r.append("buffer_load_dwordx4 %s, v2, s[24:27], s55 offen offset:%d" % (vr(BF + 12 * b + 4 * i, 4), i * 1024))
        r.append("s_add_u32 s54, s54, %d" % (16 * 5504))
        r.append("s_add_u32 s53, s53, %d" % (16 * 2816))
        r.append("s_add_u32 s55, s55, 32768")
        if "norot2" not in EXP:
            r.append("s_cmp_eq_u32 s55, s57")
            r.append("s_cselect_b32 s54, s58, s54")
            r.append("s_cselect_b32 s55, s59, s55")
            r.append("s_cselect_b32 s53, s60, s53")
        return r
    def trreads(b):
        return ["ds_read_b64_tr_b16 %s, v%d offset:%d" % (vr(AF + 16 * (b & 1) + 4 * e + 2 * rd, 2), 140 + e, b * 4096 + rd * 2048) for e in range(4) for rd in range(2)]
    for b in range(NRM - 1):
        for l in loads(b): a(l)
    stamp(a, 1)
    srd(a, 28, 10, 2752)
    a("v_bfe_u32 v4, v1, 2, 2")
    a("v_lshrrev_b32 v5, 4, v1")
    a("v_lshl_add_u32 v4, v5, 2, v4")
    a("v_bfe_u32 v5, v4, 1, 2")
    a("v_lshlrev_b32 v5, 5, v5")
    a("v_lshl_add_u32 v5, v4, 7, v5")
    a("v_and_b32 v4, 3, v1")
    a("v_lshl_add_u32 v5, v4, 3, v5")
    a("v_add_u32 v140, s40, v5")
    for e in range(1, 4): a("v_xor_b32 v%d, %d, v140" % (140 + e, e << 5))
    for i in range(0, 48, 2): a("v_mov_b64 %s, 0" % vr(ACC + i, 2))
    a("v_lshrrev_b32 v4, 4, v1")
    a("v_lshlrev_b32 v5, 3, v4")
    a("s_lshl_b32 s44, s38, 7")
    a("s_lshl_b32 s45, s33, 5")
    a("s_add_u32 s44, s44, s45")
    a("buffer_load_dwordx2 v[146:147], v5, s[28:31], s44 offen")
    a("v_and_b32 v6, 15, v1")
    a("v_mul_u32_u24 v144, 272, v6")
    a("v_lshl_add_u32 v145, v4, 4, v144")
    a("s_lshl_b32 s45, s33, 6")
    a("v_add_u32 v145, s45, v145")
    a("v_lshl_add_u32 v144, v4, 4, v144")
    a("s_mul_i32 s45, s33, 13056")
    a("s_add_u32 s45, s45, %d" % MOFF)
    a("v_add_u32 v144, s45, v144")
    a("v_add_u32 v145, %d, v145" % MOFF)
    a("s_mul_i32 s45, s39, 48")
    a("v_add_u32 v6, s45, v6")
    a("v_lshrrev_b32 v7, 5, v1")
    a("v_bfe_u32 v5, v1, 4, 1")
    a("v_lshlrev_b32 v5, 3, v5")
    a("v_lshl_add_u32 v5, v7, 9, v5")
    a("s_mov_b32 s45, 176128")
    for dt in range(3):
        a("v_add_u32 v7, %d, v6" % (16 * dt))
        a("v_lshrrev_b32 v148, 6, v7")
        a("v_mul_lo_u32 v148, v148, s45")
        a("v_bfe_u32 v149, v7, 5, 1")
        a("v_lshl_add_u32 v148, v149, 10, v148")
        a("v_and_b32 v149, 31, v7")
        a("v_lshl_add_u32 v148, v149, 4, v148")
        a("v_add_u32 v%d, v148, v5" % (150 + dt))
    a("s_lshl_b32 s47, s38, 2")
    a("s_add_u32 s47, s47, s33")
    a("s_lshl_b32 s46, s47, 11")
    a("s_add_u32 s46, s46, %d" % UF)
    a("s_mov_b32 s48, %s" % f32(GC2))
    a("s_mov_b32 s49, %s" % f32(GC1))
    a("s_mov_b32 s44, 0")
    a("s_waitcnt vmcnt(%d)" % (7 * (NRM - 2) + 1))
    if PRIO: a("s_setprio %s" % PRIO)
    for r in trreads(0): a(r)
    def step(b, ld, wait, tr=True, skip=None):
        mf = []
        for ai in range(4):
            for bi in range(3):
                acc = vr(ACC + (ai * 3 + bi) * 4, 4)
                mf.append("v_mfma_f32_16x16x32_bf16 %s, %s, %s, %s" % (acc, vr(AF + 16 * (b & 1) + 4 * ai, 4), vr(BF + 12 * b + 4 * bi, 4), acc))
        if "ldfirst" in EXP:
            if skip:
                a("s_cmp_eq_u32 s44, 1")
                a("s_cbranch_scc1 %s" % skip)
            for l in ld: a(l)
            if ld and not skip: a("s_waitcnt vmcnt(%d)" % (wait + 7))
            elif skip:
                a("s_waitcnt vmcnt(%d)" % (wait + 7))
                a.label(skip)
                a("s_waitcnt vmcnt(%d)" % (wait + 7)) if False else None
                a("s_nop 0")
            if tr:
                if not ld: a("s_waitcnt vmcnt(%d)" % wait)
                if skip:
                    a("s_cmp_eq_u32 s44, 1")
                    a("s_cbranch_scc0 %s_b" % skip)
                    a("s_waitcnt vmcnt(%d)" % wait)
                    a.label(skip + "_b")
                for r in trreads((b + 1) % NRM): a(r)
                a("s_waitcnt lgkmcnt(8)")
            else:
                a("s_waitcnt lgkmcnt(0)")
            for m in mf: a(m)
            return
        if tr:
            a("s_waitcnt vmcnt(%d)" % wait)
            for r in trreads((b + 1) % NRM): a(r)
            a("s_waitcnt lgkmcnt(8)")
        else:
            a("s_waitcnt lgkmcnt(0)")
        if skip:
            for m in mf[:4]: a(m)
            a("s_cmp_eq_u32 s44, 1")
            a("s_cbranch_scc1 %s" % skip)
            for l in ld: a(l)
            a.label(skip)
            for m in mf[4:]: a(m)
            return
        n = 0
        for m in mf:
            a(m)
            for _ in range(2):
                if n < len(ld): a(ld[n]); n += 1
    W = 7 * (NRM - 3)
    a.label("K2_mloop")
    for b in range(NRM): step(b, loads((b + NRM - 1) % NRM), W, skip="K2_msk" if b == NRM - 1 else None)
    a("s_add_u32 s44, s44, 1")
    a("s_cmp_lt_u32 s44, 2")
    a("s_cbranch_scc1 K2_mloop")
    step(0, [], 14)
    step(1, [], 7)
    step(2, [], 0)
    step(3, [], 0, tr=False)
    stamp(a, 2)
    if "nopref" not in EXP:
        a("s_mul_i32 s44, s38, 11")
        a("s_add_u32 s44, s44, s39")
        a("s_mul_i32 s45, s33, 242")
        a("s_add_u32 s44, s44, s45")
        a("s_cmp_lt_u32 s44, 312")
        a("s_cbranch_scc0 K2_np")
        a("s_mul_i32 s45, s44, 171")
        a("s_lshr_b32 s45, s45, 9")
        a("s_mul_i32 s50, s45, 3")
        a("s_sub_u32 s50, s44, s50")
        a("s_mul_i32 s50, s50, 232")
        a("s_add_u32 s50, s50, s45")
        a("s_add_u32 s50, s50, %d" % PFSPLIT)
        a("s_lshl_b32 s50, s50, 13")
        srd(a, 16, 6, 1376 * 4096)
        a("v_lshlrev_b32 v154, 7, v1")
        a("buffer_load_dword v155, v154, s[16:19], s50 offen")
        a.label("K2_np")
    lds_sync(a, 1, "K2_sy1", 4)
    for ai in range(4):
        for bi in range(3):
            a("ds_write_b128 v144, %s offset:%d" % (vr(ACC + (ai * 3 + bi) * 4, 4), bi * 16 * 272 + ai * 64))
    for j in range(2):
        a("v_lshlrev_b32 v%d, 16, v%d" % (136 + 2 * j, 146 + j))
        a("v_and_b32 v%d, 0xffff0000, v%d" % (137 + 2 * j, 146 + j))
    a("s_waitcnt lgkmcnt(0)")
    lds_sync(a, 2, "K2_sy2", 4)
    a("s_cmp_ge_u32 s47, 86")
    a("s_cbranch_scc1 K2_mdone")
    R = 56
    for k in range(3):
        for wv in range(4):
            a("ds_read_b128 %s, v145 offset:%d" % (vr(R + 16 * k + 4 * wv, 4), wv * 13056 + k * 16 * 272))
    for k in range(3):
        r = R + 16 * k
        if k == 2:
            a("s_cmp_eq_u32 s39, 10")
            a("s_cbranch_scc1 K2_mdone")
        a("s_waitcnt lgkmcnt(%d)" % (8 - 4 * k))
        a("v_pk_add_f32 %s, %s, %s" % (vr(r, 2), vr(r, 2), vr(r + 4, 2)))
        a("v_pk_add_f32 %s, %s, %s" % (vr(r + 2, 2), vr(r + 2, 2), vr(r + 6, 2)))
        a("v_pk_add_f32 %s, %s, %s" % (vr(r + 8, 2), vr(r + 8, 2), vr(r + 12, 2)))
        a("v_pk_add_f32 %s, %s, %s" % (vr(r + 10, 2), vr(r + 10, 2), vr(r + 14, 2)))
        a("v_pk_add_f32 %s, %s, %s" % (vr(r, 2), vr(r, 2), vr(136, 2)))
        a("v_pk_add_f32 %s, %s, %s" % (vr(r + 2, 2), vr(r + 2, 2), vr(138, 2)))
        a("v_pk_add_f32 %s, %s, %s" % (vr(r, 2), vr(r, 2), vr(r + 8, 2)))
        a("v_pk_add_f32 %s, %s, %s" % (vr(r + 2, 2), vr(r + 2, 2), vr(r + 10, 2)))
        a("v_pk_mul_f32 %s, %s, %s" % (vr(r + 8, 2), vr(r, 2), vr(r, 2)))
        a("v_pk_mul_f32 %s, %s, %s" % (vr(r + 10, 2), vr(r + 2, 2), vr(r + 2, 2)))
        for j in range(4): a("v_mov_b32 v%d, s49" % (r + 12 + j))
        for j in range(4): a("v_fmac_f32 v%d, s48, v%d" % (r + 12 + j, r + 8 + j))
        a("v_pk_mul_f32 %s, %s, %s" % (vr(r + 8, 2), vr(r, 2), vr(r + 12, 2)))
        a("v_pk_mul_f32 %s, %s, %s" % (vr(r + 10, 2), vr(r + 2, 2), vr(r + 14, 2)))
        for j in range(4): a("v_exp_f32 v%d, v%d" % (r + 8 + j, r + 8 + j))
        for j in range(4): a("v_add_f32 v%d, 1.0, v%d" % (r + 8 + j, r + 8 + j))
        for j in range(4): a("v_rcp_f32 v%d, v%d" % (r + 8 + j, r + 8 + j))
        a("s_nop 0")
        a("v_pk_mul_f32 %s, %s, %s" % (vr(r, 2), vr(r, 2), vr(r + 8, 2)))
        a("v_pk_mul_f32 %s, %s, %s" % (vr(r + 2, 2), vr(r + 2, 2), vr(r + 10, 2)))
        a("v_cvt_pk_bf16_f32 v%d, v%d, v%d" % (r + 4, r, r + 1))
        a("v_cvt_pk_bf16_f32 v%d, v%d, v%d" % (r + 5, r + 2, r + 3))
        a("buffer_store_dwordx2 %s, v%d, s[24:27], s46 offen" % (vr(r + 4, 2), 150 + k))
    a.label("K2_mdone")
    stamp(a, 3)
    stamp_flush(a, 1, 12)
    a("s_endpgm")
    a.label("K2_pref")
    if "nopref" in EXP: a("s_endpgm")
    a("s_lshl_b32 s36, s34, 1")
    a("s_add_u32 s36, s36, s35")
    a("s_sub_u32 s36, s36, 30")
    a("s_lshl_b32 s36, s36, 2")
    a("s_add_u32 s36, s36, s33")
    a("v_lshlrev_b32 v4, 7, v1")
    a("s_waitcnt lgkmcnt(0)")
    srd(a, 16, 6, 1376 * 4096)
    srd(a, 20, 4, 512 * 1024)
    a.label("K2_pf1")
    a("s_cmp_lt_u32 s36, 64")
    a("s_cbranch_scc0 K2_pf2")
    a("s_lshl_b32 s39, s36, 13")
    a("buffer_load_dword v8, v4, s[20:23], s39 offen")
    a("s_add_u32 s36, s36, 56")
    a("s_branch K2_pf1")
    a.label("K2_pf2")
    a("s_sub_u32 s37, s36, 64")
    a("s_mul_i32 s38, s37, 171")
    a("s_lshr_b32 s38, s38, 9")
    a("s_mul_i32 s39, s38, 3")
    a("s_sub_u32 s39, s37, s39")
    a("s_mul_i32 s39, s39, 232")
    a("s_add_u32 s39, s39, s38")
    a("s_lshl_b32 s39, s39, 13")
    a("buffer_load_dword v8, v4, s[16:19], s39 offen")
    a("s_add_u32 s36, s36, 56")
    a("s_cmp_lt_u32 s36, %d" % (64 + 3 * PFSPLIT))
    a("s_cbranch_scc1 K2_pf2")
    stamp_flush(a, 1, 12)
    a("s_endpgm")
    a.label("K2_attn")
    if "noattn" in EXP: a("s_endpgm")
    VS = 1056; VOFF = 16384
    a("s_lshl_b32 s36, s34, 2")
    a("s_and_b32 s37, s35, 3")
    a("s_add_u32 s36, s36, s37")
    a("s_lshr_b32 s37, s35, 2")
    a("s_lshl_b32 s38, s36, 16")
    a("s_add_u32 s39, s38, %d" % KF)
    a("s_add_u32 s40, s38, %d" % VF)
    a("s_lshl_b32 s41, s37, 3")
    a("s_add_u32 s41, s41, s33")
    a("s_lshl_b32 s42, s41, 10")
    a("s_add_u32 s42, s42, s38")
    a("s_add_u32 s43, s42, 4096")
    a("s_lshl_b32 s44, s37, 3")
    a("s_lshl_b32 s45, s33, 2")
    a("s_add_u32 s44, s44, s45")
    a("s_sub_u32 s44, s44, 8")
    a("v_lshrrev_b32 v3, 5, v1")
    a("v_lshlrev_b32 v200, 9, v3")
    a("s_lshl_b32 s45, s33, 12")
    a("s_mul_i32 s46, s33, %d" % (4 * VS))
    a("s_add_u32 s46, s46, %d" % VOFF)
    a("v_mov_b32 v203, s46")
    a("s_lshl_b32 s50, s44, 10")
    a("s_cmp_lt_i32 s44, 0")
    a("s_cselect_b64 s[48:49], -1, 0")
    a("s_cselect_b32 s51, 0, s50")
    a("s_cselect_b32 s52, 0, 1024")
    a("s_cselect_b32 s50, %d, s50" % BIG)
    a("s_cselect_b32 s56, 0, 0x3f803f80")
    a("v_cndmask_b32 v202, v2, v200, s[48:49]")
    a("v_mov_b32 v204, s56")
    a("v_mov_b32 v205, s56")
    a("s_waitcnt lgkmcnt(0)")
    srd_off(a, 16, 12, 39, 65536)
    srd_off(a, 20, 12, 40, 65536)
    srd(a, 24, 12, WS_USED)
    a("buffer_load_dwordx4 v[4:7], v2, s[24:27], s42 offen")
    for u in range(4):
        a("s_add_u32 m0, s45, %d" % (u * 1024))
        a("s_nop 0")
        a("buffer_load_dwordx4 v202, s[16:19], s51 offen lds")
        a("s_add_u32 m0, s46, %d" % (u * VS))
        a("s_add_u32 s51, s51, s52")
        a("buffer_load_dwordx4 v2, s[20:23], s50 offen lds")
        a("s_add_u32 s50, s50, 1024")
        a("ds_write_b64 v203, v[204:205] offset:%d" % (u * VS + 1024))
        a("ds_write_b64 v203, v[204:205] offset:%d" % (u * VS + 1032))
    a("buffer_load_dwordx4 v[208:211], v2, s[24:27], s43 offen")
    stamp(a, 1)
    KB = 8; VB = 20; PB = 36; SB = 48; COLD = 96; CDIAG = 112; CN = 128; OA = 144; C2O = 160; C2D = 176
    a("v_and_b32 v200, 31, v1")
    a("v_lshlrev_b32 v201, 2, v3")
    a("v_sub_u32 v200, v200, v201")
    a("v_mov_b32 v201, %s" % f32(NEGBIG))
    a("v_mov_b32 v202, 0")
    for i0 in range(0, 16, 4):
        for i in range(i0, i0 + 4):
            a("v_cmp_le_i32 s[%d:%d], %d, v200" % (56 + 2 * (i - i0), 57 + 2 * (i - i0), 8 * (i // 4) + i % 4))
        for i in range(i0, i0 + 4):
            m = "s[%d:%d]" % (56 + 2 * (i - i0), 57 + 2 * (i - i0))
            a("v_cndmask_b32 v%d, v201, v202, %s" % (CDIAG + i, m))
            a("v_cndmask_b32 v%d, v202, v201, %s" % (COLD + i, m))
    a("s_lshl_b32 s45, s33, 10")
    a("v_add_u32 v200, s45, v2")
    a("s_mul_i32 s45, s33, %d" % VS)
    a("s_add_u32 s45, s45, %d" % VOFF)
    a("v_and_b32 v204, 15, v1")
    a("v_lshlrev_b32 v204, 4, v204")
    a("v_lshl_add_u32 v204, v3, 8, v204")
    a("v_add_u32 v204, s45, v204")
    a("v_add_u32 v205, 512, v204")
    a("v_bfe_u32 v206, v1, 4, 1")
    a("v_cmp_eq_u32 vcc, 1, v206")
    a("s_add_u32 s45, s45, 1024")
    a("v_mov_b32 v206, s45")
    a("s_lshr_b32 s45, s41, 1")
    a("v_cndmask_b32 v204, v204, v206, vcc")
    a("v_cndmask_b32 v205, v205, v206, vcc")
    a("s_lshl_b32 s45, s45, 16")
    a("s_lshl_b32 s46, s36, 11")
    a("s_add_u32 s45, s45, s46")
    a("s_and_b32 s46, s41, 1")
    a("s_lshl_b32 s46, s46, 10")
    a("s_add_u32 s45, s45, s46")
    a("s_add_u32 s45, s45, %d" % OF)
    a("s_mov_b32 s47, 0")
    a("s_waitcnt vmcnt(0) lgkmcnt(0)")
    lds_sync(a, 0, "K2_sy0", 202)
    stamp(a, 2)
    if "attnloadonly" in EXP: a("s_endpgm")
    a.label("K2_aloop")
    kread = lambda p: "ds_read_b128 %s, v200 offset:%d" % (vr(KB + 4 * (p % 3), 4), p * 1024)
    S = lambda i: SB + 16 * i
    def maxops(sb):
        for i in range(0, 16, 2):
            m = 202 + ((i // 2) & 1)
            a("v_max3_f32 v%d, v%d, v%d, v%d" % (m, m, sb + i, sb + i + 1))
    for p in range(3): a(kread(p))
    a("v_mov_b32 v202, %s" % f32(NEGBIG))
    a("v_mov_b32 v203, %s" % f32(NEGBIG))
    for i in range(0, 16, 2): a("v_mov_b64 %s, 0" % vr(OA + i, 2))
    for p in range(9):
        a("s_waitcnt lgkmcnt(%d)" % min(2, 8 - p))
        c = vr(COLD, 16) if p == 0 else (vr(CDIAG, 16) if p == 8 else "0")
        a("v_mfma_f32_32x32x16_bf16 %s, %s, v[4:7], %s" % (vr(S(p % 3), 16), vr(KB + 4 * (p % 3), 4), c))
        if p + 3 < 9: a(kread(p + 3))
        if p >= 1:
            a("s_nop 7" if p == 1 else "s_nop 1")
            maxops(S((p - 1) % 3))
    for p in range(3): a(kread(p))
    a("s_nop 7")
    maxops(S(8 % 3))
    a("v_max_f32 v202, v202, v203")
    a("v_mov_b32 v203, v202")
    a("s_nop 1")
    a("v_permlane32_swap_b32 v202, v203")
    a("v_max_f32 v202, v202, v203")
    for i in range(0, 16, 2):
        a("v_pk_add_f32 %s, %s, v[202:203] op_sel_hi:[1,0] neg_lo:[0,1] neg_hi:[0,1]" % (vr(C2O + i, 2), vr(COLD + i, 2)))
    a("v_sub_f32 v%d, 0, v202" % CN)
    a("v_sub_f32 v%d, 0, v202" % (CN + 1))
    for i in range(2, 16, 2): a("v_mov_b64 %s, %s" % (vr(CN + i, 2), vr(CN, 2)))
    for i in range(0, 16, 2):
        a("v_pk_add_f32 %s, %s, v[202:203] op_sel_hi:[1,0] neg_lo:[0,1] neg_hi:[0,1]" % (vr(C2D + i, 2), vr(CDIAG + i, 2)))
    def vread(p):
        return ["ds_read_b128 %s, v%d offset:%d" % (vr(VB + 8 * (p % 2) + 4 * i, 4), 204 + i, p * VS) for i in range(2)]
    def smfma(p):
        c = vr(C2O, 16) if p == 0 else (vr(C2D, 16) if p == 8 else vr(CN, 16))
        a("v_mfma_f32_32x32x16_bf16 %s, %s, v[4:7], %s" % (vr(S(p % 2), 16), vr(KB + 4 * (p % 3), 4), c))
    for r in vread(0): a(r)
    a("s_waitcnt lgkmcnt(4)")
    smfma(0)
    a(kread(3))
    for p in range(9):
        if p + 1 < 9:
            a("s_waitcnt lgkmcnt(%d)" % P2_WAIT_K[p])
            smfma(p + 1)
            for r in vread(p + 1): a(r)
            if p + 4 < 9: a(kread(p + 4))
            if p == 0: a("s_nop 7")
        sb = S(p % 2)
        if "noexp" not in EXP:
            for i in range(16): a("v_exp_f32 v%d, v%d" % (sb + i, sb + i))
        else: a("s_nop 7")
        for i in range(8): a("v_cvt_pk_bf16_f32 v%d, v%d, v%d" % (PB + i, sb + 2 * i, sb + 2 * i + 1))
        a("s_waitcnt lgkmcnt(%d)" % P2_WAIT_V[p])
        a("s_nop 0")
        for i in range(2):
            a("v_mfma_f32_32x32x16_bf16 %s, %s, %s, %s" % (vr(OA, 16), vr(VB + 8 * (p % 2) + 4 * i, 4), vr(PB + 4 * i, 4), vr(OA, 16)))
    a("v_add_u32 v200, 4096, v200")
    a("v_add_u32 v204, %d, v204" % (4 * VS))
    a("v_add_u32 v205, %d, v205" % (4 * VS))
    a("v_mov_b64 v[4:5], v[208:209]")
    a("v_mov_b64 v[6:7], v[210:211]")
    a("s_nop 7")
    a("v_rcp_f32 v202, v%d" % (OA + 8))
    a("s_nop 0")
    for i in range(0, 8, 2): a("v_pk_mul_f32 %s, %s, v[202:203] op_sel_hi:[1,0]" % (vr(OA + i, 2), vr(OA + i, 2)))
    for i in range(4): a("v_cvt_pk_bf16_f32 v%d, v%d, v%d" % (212 + i, OA + 2 * i, OA + 2 * i + 1))
    a("buffer_store_dwordx4 v[212:215], v2, s[24:27], s45 offen %s" % K2POL)
    a("s_add_u32 s45, s45, %d" % (2 * 65536))
    a("s_add_u32 s47, s47, 1")
    if STAMPS:
        a("s_cmp_eq_u32 s47, 1")
        a("s_cbranch_scc0 K2_st4")
        stamp(a, 3)
        a.label("K2_st4")
    a("s_cmp_lt_u32 s47, 2")
    a("s_cbranch_scc1 K2_aloop")
    stamp(a, 4)
    stamp_flush(a, 1, 12)
    a.label("K2_end")
    a("s_endpgm")
    return a.text(), 232
PFSPLIT = int(os.environ.get("PFSPLIT", "128"))

def _p2_waits():
    q = ["K0", "K1", "K2", "V0a", "V0b", "K3"]
    wk, wv = [], []
    def need(name): return len(q) - 1 - q.index(name)
    for p in range(9):
        if p + 1 < 9:
            wk.append(need("K%d" % (p + 1)))
            q.extend(["V%da" % (p + 1), "V%db" % (p + 1)])
            if p + 4 < 9: q.append("K%d" % (p + 4))
        wv.append(need("V%db" % p))
    return wk, wv
P2_WAIT_K, P2_WAIT_V = _p2_waits()

def gen_k3():
    a = Asm()
    a("s_cmp_ge_u32 s2, 256")
    a("s_cbranch_scc1 K3_end")
    stamps_init(a)
    a("s_load_dwordx2 s[4:5], s[0:1], 16")
    a("s_load_dwordx4 s[8:11], s[0:1], 48")
    a("s_load_dwordx2 s[14:15], s[0:1], 72")
    a("s_load_dwordx2 s[12:13], s[0:1], 88")
    a("v_and_b32 v1, 63, v0")
    a("v_lshrrev_b32 v2, 6, v0")
    a("s_and_b32 s34, s2, 7")
    a("v_readfirstlane_b32 s33, v2")
    a("s_lshr_b32 s35, s2, 3")
    if "scramble" in EXP:
        a("s_add_u32 s34, s34, s35")
        a("s_and_b32 s34, s34, 7")
    a("v_lshlrev_b32 v2, 4, v1")
    a("s_lshr_b32 s36, s34, 1")
    a("s_lshl_b32 s36, s36, 3")
    a("s_lshr_b32 s37, s35, 2")
    a("s_add_u32 s36, s36, s37")
    a("s_and_b32 s37, s34, 1")
    a("s_lshl_b32 s37, s37, 2")
    a("s_and_b32 s38, s35, 3")
    a("s_add_u32 s37, s37, s38")
    a("v_lshrrev_b32 v3, 3, v1")
    a("v_bfe_u32 v4, v1, 4, 1")
    a("v_lshlrev_b32 v4, 2, v4")
    a("v_and_b32 v5, 7, v1")
    a("v_xor_b32 v4, v4, v5")
    a("v_lshlrev_b32 v4, 4, v4")
    a("s_lshl_b32 s40, s33, 14")
    ACC = 16; BUF = 80; WF = 144
    NR = 8
    a("s_cmp_eq_u32 s33, 0")
    a("s_cbranch_scc0 K3_mlp2")
    for role in (0, 1):
        if role == 0:
            a("v_lshl_add_u32 v8, v3, 10, v4")
            RDS = 1024; RSTR = 1024; HFSH = 9
            a("s_lshl_b32 s41, s37, 7")
            a("s_lshl_b32 s42, s36, 16")
            a("s_add_u32 s42, s42, %d" % OF)
            a("s_sub_u32 s46, %d, s41" % (512 * 1024))
            a("s_mov_b32 s44, 32")
            a("s_waitcnt lgkmcnt(0)")
            srd_off(a, 16, 4, 41, "s46")
            srd_off(a, 20, 12, 42, 32 * 2048)
        else:
            a.label("K3_mlp2")
            a("v_lshl_add_u32 v8, v3, 12, v4")
            RDS = 512; RSTR = 4096; HFSH = 10
            a("s_sub_u32 s43, s33, 1")
            a("s_mul_i32 s43, s43, 29")
            a("s_cmp_eq_u32 s33, 3")
            a("s_cselect_b32 s44, 28, 29")
            a("s_lshl_b32 s41, s43, 16")
            a("s_lshl_b32 s45, s36, 7")
            a("s_add_u32 s41, s41, s45")
            a("s_mul_i32 s42, s37, 176128")
            a("s_lshl_b32 s46, s43, 11")
            a("s_add_u32 s42, s42, s46")
            a("s_add_u32 s42, s42, %d" % UF)
            a("s_lshl_b32 s46, s44, 16")
            a("s_sub_u32 s46, s46, s45")
            a("s_lshl_b32 s47, s44, 11")
            a("s_waitcnt lgkmcnt(0)")
            srd_off(a, 16, 8, 41, "s46")
            srd_off(a, 20, 12, 42, "s47")
        def loads(b):
            r = []
            r.append("s_add_u32 m0, s40, %d" % (b * 2048))
            r.append("s_add_u32 s50, s48, %d" % (8 * RSTR))
            r.append("buffer_load_dwordx4 v8, s[16:19], s48 offen lds")
            r.append("s_add_u32 m0, s40, %d" % (b * 2048 + 1024))
            r.append("buffer_load_dwordx4 %s, v2, s[20:23], s49 offen" % vr(BUF + 8 * b, 4))
            r.append("buffer_load_dwordx4 v8, s[16:19], s50 offen lds")
            r.append("buffer_load_dwordx4 %s, v2, s[20:23], s49 offen offset:1024" % vr(BUF + 8 * b + 4, 4))
            r.append("s_add_u32 s48, s48, %d" % (16 * RSTR))
            r.append("s_add_u32 s49, s49, 2048")
            if "norot3" not in EXP:
                r.append("s_cmp_eq_u32 s49, s57")
                r.append("s_cselect_b32 s48, 0, s48")
                r.append("s_cselect_b32 s49, 0, s49")
            return r
        def trreads(b):
            r = []
            for mt in range(2):
                for rd in range(2):
                    r.append("ds_read_b64_tr_b16 %s, v%d offset:%d" % (vr(WF + 8 * (b & 1) + 4 * mt + 2 * rd, 2), 10 + mt, b * 2048 + rd * RDS))
            return r
        if "norot3" in EXP:
            a("s_mov_b32 s48, 0")
            a("s_mov_b32 s49, 0")
        else:
            a("s_lshr_b32 s53, s35, 2")
            a("s_lshl_b32 s53, s53, 2")
            a("s_and_b32 s54, s35, 3")
            a("s_mul_i32 s54, s54, 7")
            a("s_add_u32 s53, s53, s54")
            a("s_sub_u32 s54, s53, s44")
            a("s_cmp_ge_u32 s53, s44")
            a("s_cselect_b32 s53, s54, s53")
            a("s_lshl_b32 s48, s53, %d" % ((16 * RSTR).bit_length() - 1))
            a("s_lshl_b32 s49, s53, 11")
            a("s_lshl_b32 s57, s44, 11")
        for b in range(NR - 1):
            for l in loads(b): a(l)
        stamp(a, 1)
        a("v_bfe_u32 v6, v1, 2, 2")
        a("v_lshlrev_b32 v6, 7, v6")
        a("v_bfe_u32 v7, v1, 3, 1")
        a("v_lshl_add_u32 v6, v7, 6, v6")
        a("v_bfe_u32 v7, v1, 4, 1")
        a("v_lshl_add_u32 v6, v7, 5, v6")
        a("v_and_b32 v7, 3, v1")
        a("v_lshl_add_u32 v6, v7, 3, v6")
        a("v_add_u32 v6, s40, v6")
        a("v_lshrrev_b32 v7, 5, v1")
        a("v_lshl_add_u32 v10, v7, %d, v6" % HFSH)
        a("v_xor_b32 v11, 64, v10")
        for i in range(0, 64, 2): a("v_mov_b64 %s, 0" % vr(ACC + i, 2))
        a("s_sub_u32 s51, s44, 2")
        a("s_waitcnt vmcnt(%d)" % (4 * (NR - 2)))
        for r in trreads(0): a(r)
        L = "K3_loop%d" % role
        a.label(L)
        for b in range(NR):
            nb = (b + 1) % NR
            a("s_cmp_lt_i32 s51, 5")
            a("s_cbranch_scc1 %s_t%d" % (L, b))
            a("s_waitcnt vmcnt(%d)" % (4 * (NR - 3)))
            a.label("%s_r%d" % (L, b))
            for r in trreads(nb): a(r)
            a("s_waitcnt lgkmcnt(4)")
            mf = []
            for i in range(2):
                for j in range(2):
                    acc = vr(ACC + (i * 2 + j) * 16, 16)
                    wf = lambda t: vr(WF + 8 * (b & 1) + 4 * t, 4)
                    af = lambda t: vr(BUF + 8 * b + 4 * t, 4)
                    if role == 0: mf.append("v_mfma_f32_32x32x16_bf16 %s, %s, %s, %s" % (acc, wf(i), af(j), acc))
                    else: mf.append("v_mfma_f32_32x32x16_bf16 %s, %s, %s, %s" % (acc, af(i), wf(j), acc))
            a(mf[0]); a(mf[1])
            a("s_cmp_lt_i32 s51, 6")
            a("s_cbranch_scc1 %s_s%d" % (L, b))
            for l in loads((b + NR - 1) % NR): a(l)
            a.label("%s_s%d" % (L, b))
            a(mf[2]); a(mf[3])
            a("s_sub_u32 s51, s51, 1")
            a("s_cmp_lt_i32 s51, -1")
            if b < NR - 1: a("s_cbranch_scc1 K3_red")
            else:
                a("s_cbranch_scc0 %s" % L)
                a("s_branch K3_red")
        for b in range(NR):
            a.label("%s_t%d" % (L, b))
            a("s_cmp_lt_i32 s51, 2")
            a("s_cbranch_scc1 %s_u%d" % (L, b))
            a("s_waitcnt vmcnt(8)")
            a("s_branch %s_r%d" % (L, b))
            a.label("%s_u%d" % (L, b))
            a("s_waitcnt vmcnt(0)")
            a("s_branch %s_r%d" % (L, b))
    a.label("K3_red")
    stamp(a, 2)
    srd(a, 24, 12, WS_USED)
    srd(a, 28, 10, 4096)
    srd(a, 44, 14, 2048 * 1024)
    a("s_lshl_b32 s52, s36, 6")
    a("s_lshl_b32 s53, s33, 4")
    a("s_add_u32 s52, s52, s53")
    a("s_lshl_b32 s53, s52, 2")
    a("s_add_u32 s53, s53, %d" % GW)
    a("s_lshl_b32 s54, s52, 1")
    a("v_lshlrev_b32 v4, 2, v3")
    a("v_lshlrev_b32 v5, 1, v3")
    a("buffer_load_dword v12, v4, s[24:27], s53 offen")
    a("buffer_load_dword v13, v4, s[24:27], s53 offen offset:32")
    a("buffer_load_ushort v14, v5, s[28:31], s54 offen")
    a("buffer_load_ushort v15, v5, s[28:31], s54 offen offset:16")
    RST = 272; WB = 64 * RST
    a("v_and_b32 v6, 31, v1")
    a("v_mul_u32_u24 v6, %d, v6" % RST)
    a("v_lshl_add_u32 v6, v7, 4, v6")
    a("s_mul_i32 s55, s33, %d" % WB)
    a("s_add_u32 s55, s55, 65536")
    a("v_add_u32 v6, s55, v6")
    for i in range(2):
        for j in range(2):
            for g in range(4):
                a("ds_write_b128 v6, %s offset:%d" % (vr(ACC + (i * 2 + j) * 16 + 4 * g, 4), j * 32 * RST + i * 128 + g * 32))
    a("s_lshl_b32 s55, s33, 4")
    a("v_add_u32 v6, s55, v3")
    a("v_mul_u32_u24 v6, %d, v6" % RST)
    a("v_and_b32 v8, 7, v1")
    a("v_lshl_add_u32 v6, v8, 5, v6")
    a("v_add_u32 v6, 65536, v6")
    a("v_lshlrev_b32 v8, 4, v8")
    a("v_lshl_add_u32 v8, v3, 10, v8")
    a("s_lshl_b32 s55, s52, 10")
    a("s_lshl_b32 s56, s37, 7")
    a("s_add_u32 s55, s55, s56")
    a("s_add_u32 s56, s55, 8192")
    a("s_waitcnt lgkmcnt(0)")
    a("s_barrier")
    stamp(a, 3)
    R = 80
    for ps in range(2):
        for wv in range(4):
            for hh in range(2):
                a("ds_read_b128 %s, v6 offset:%d" % (vr(R + 32 * ps + 8 * wv + 4 * hh, 4), wv * WB + ps * 8 * RST + hh * 16))
    a("s_waitcnt vmcnt(0)")
    for ps in range(2):
        g = 12 + ps; b2 = 14 + ps
        a("v_lshlrev_b32 v%d, 16, v%d" % (150 + 6 * ps + 4, b2))
        a("v_sub_f32 v%d, 1.0, v%d" % (150 + 6 * ps, g))
        a("v_cvt_pk_bf16_f32 v%d, v%d, v%d" % (150 + 6 * ps, 150 + 6 * ps, 150 + 6 * ps))
        a("v_lshlrev_b32 v%d, 16, v%d" % (150 + 6 * ps, 150 + 6 * ps))
        a("v_mov_b32 v%d, v%d" % (150 + 6 * ps + 2, g))
    for ps in range(2):
        r = R + 32 * ps; c = 150 + 6 * ps
        a("s_waitcnt lgkmcnt(%d)" % (8 - 8 * ps))
        for k in range(4):
            a("v_pk_add_f32 %s, %s, %s" % (vr(r + 8 + 2 * k, 2), vr(r + 8 + 2 * k, 2), vr(r + 16 + 2 * k, 2)))
        for k in range(4):
            a("v_pk_add_f32 %s, %s, %s op_sel_hi:[1,0]" % (vr(r + 24 + 2 * k, 2), vr(r + 24 + 2 * k, 2), vr(c + 4, 2)))
        for k in range(4):
            a("v_pk_mul_f32 %s, %s, %s op_sel_hi:[1,0]" % (vr(r + 2 * k, 2), vr(r + 2 * k, 2), vr(c + 2, 2)))
        for k in range(4):
            a("v_pk_add_f32 %s, %s, %s" % (vr(r + 8 + 2 * k, 2), vr(r + 8 + 2 * k, 2), vr(r + 24 + 2 * k, 2)))
        for k in range(4):
            a("v_pk_fma_f32 %s, %s, %s, %s op_sel_hi:[1,0,1]" % (vr(r + 2 * k, 2), vr(r + 8 + 2 * k, 2), vr(c, 2), vr(r + 2 * k, 2)))
        for k in range(4): a("v_cvt_pk_bf16_f32 v%d, v%d, v%d" % (r + 16 + k, r + 2 * k, r + 2 * k + 1))
        a("buffer_store_dwordx4 %s, v8, s[44:47], s%d offen" % (vr(r + 16, 4), 55 + ps))
    stamp(a, 4)
    stamp_flush(a, 2, 12)
    a.label("K3_end")
    a("s_endpgm")
    return a.text(), 162

HEADER = open("gated_mix__sliding_block__mixer_token_mlp__prompt.s.ref").read().split("; Override launch")[0]

def build(kernels):
    s = HEADER
    for name, grid, block, lds, _ in kernels:
        s += "; @launch kernel=%s grid=(%d,1,1) block=(%d,1,1) lds=%d\n" % (name, grid, block, lds)
    s += '.amdgcn_target "amdgcn-amd-amdhsa--gfx950"\n.text\n'
    descs = ""
    for name, grid, block, lds, fn in kernels:
        body, vg = fn()
        s += kernel_header(name) + body
        descs += kernel_desc(name, vg)
    s += '.section .rodata,"a"\n' + descs
    if os.environ.get("ALLSC1", "1") == "1":
        out = []
        for l in s.split("\n"):
            if "buffer_store_" in l and "sc1" not in l: l = l.rstrip() + " sc1"
            out.append(l)
        s = "\n".join(out)
    return s

if __name__ == "__main__":
    ks = [("k1_kernel", 256, 512, 2 * K1W, gen_k1), ("k2_kernel", 256, 512, MOFF + 4 * NRM * 4096, gen_k2), ("k3_kernel", 256, 256, 65536 + 69632, gen_k3)]
    LIST = os.environ.get("LIST", "")
    out = sys.argv[1] if len(sys.argv) > 1 else "out.s"
    if len(sys.argv) > 2 and sys.argv[2] == "stamps": STAMPS = True
    txt = build(ks)
    if LIST:
        lines = txt.split("\n")
        ll = [l for l in lines if l.startswith("; @launch")]
        i0 = lines.index(ll[0])
        lines = lines[:i0] + [ll[int(c)] for c in LIST] + lines[i0 + len(ll):]
        txt = "\n".join(lines)
    open(out, "w").write(txt)
```

```python
import sys, struct, os
from asmlib import *

QF = 0
KF = 2 << 20
VF = 4 << 20
HT = 6 << 20
W1O = 9 << 20
GW = 14 << 20
OF = 15 << 20
UF = 17 << 20
WS_USED = 19 << 20
BIG = 0x40000000

STAMPS = False
EXP = set(os.environ.get("EXP", "").split(","))
AUXPOL = os.environ.get("AUXPOL", "")
QKVPOL = os.environ.get("QKVPOL", "")
K2POL = os.environ.get("K2POL", "")
PRIO = os.environ.get("PRIO", "")
TS = 24 << 20
def f32(x): return "0x%08x" % struct.unpack("<I", struct.pack("<f", x))[0]
QSCALE = 0.25 * 1.4426950408889634
GC1 = -2.0 * 0.7978845608028654 * 1.4426950408889634
GC2 = GC1 * 0.044715
NEGBIG = -1.0e30

def stamp(a, n):
    if STAMPS: a("s_memrealtime s[%d:%d]" % (70 + 2 * n, 71 + 2 * n))
def stamp_flush(a, kidx, wsptr, nst=6):
    if not STAMPS: return
    a("s_waitcnt vmcnt(0)")
    stamp(a, nst - 1)
    a("s_memtime s[92:93]")
    a("s_mov_b32 s84, s%d" % wsptr)
    a("s_and_b32 s85, s%d, 0xffff" % (wsptr + 1))
    a("s_mov_b32 s86, 0x%x" % (32 << 20))
    a("s_mov_b32 s87, 0x00020000")
    a("v_lshrrev_b32 v0, 6, v0")
    a("s_lshl_b32 s88, s2, 4")
    a("v_add_u32 v0, s88, v0")
    a("v_lshlrev_b32 v0, 5, v0")
    a("s_waitcnt lgkmcnt(0)")
    a("s_mov_b32 s88, %d" % (TS + (kidx << 20)))
    for i in range(nst):
        a("v_mov_b32 v1, s%d" % (70 + 2 * i))
        a("buffer_store_dword v1, v0, s[84:87], s88 offen offset:%d" % (4 * i))
        a("s_nop 1")
    a("s_sub_u32 s92, s92, s90")
    a("v_mov_b32 v1, s92")
    a("buffer_store_dword v1, v0, s[84:87], s88 offen offset:24")
def stamps_init(a):
    if STAMPS:
        for i in range(1, 5): a("s_mov_b64 s[%d:%d], 0" % (70 + 2 * i, 71 + 2 * i))
        stamp(a, 0)
        a("s_memtime s[90:91]")

def srd(a, d, base, nrec):
    a("s_mov_b32 s%d, s%d" % (d, base))
    a("s_and_b32 s%d, s%d, 0xffff" % (d + 1, base + 1))
    a("s_mov_b32 s%d, %s" % (d + 2, nrec if isinstance(nrec, str) else "0x%x" % nrec))
    a("s_mov_b32 s%d, 0x00020000" % (d + 3))
def srd_off(a, d, base, soff, nrec):
    a("s_add_u32 s%d, s%d, s%d" % (d, base, soff))
    a("s_addc_u32 s%d, s%d, 0" % (d + 1, base + 1))
    a("s_and_b32 s%d, s%d, 0xffff" % (d + 1, d + 1))
    a("s_mov_b32 s%d, %s" % (d + 2, nrec if isinstance(nrec, str) else "0x%x" % nrec))
    a("s_mov_b32 s%d, 0x00020000" % (d + 3))

def code_prefetch(a, tag, start, nchunks, vaddr, vdead):
    if "nocodepf" in EXP: return
    a("s_getpc_b64 s[64:65]")
    a.label("CP_%s" % tag)
    a("s_add_u32 s64, s64, %s-CP_%s" % (start, tag))
    a("s_addc_u32 s65, s65, %s" % ("-1" if tag.endswith("n") else "0"))
    a("v_lshlrev_b32 v%d, 7, v1" % vaddr)
    for c in range(nchunks):
        a("v_min_u32 v%d, CODE_END-%s-4, v%d" % (vaddr + 2, start, vaddr))
        a("global_load_dword v%d, v%d, s[64:65]" % (vdead, vaddr + 2))
        if c + 1 < nchunks: a("v_add_u32 v%d, 8192, v%d" % (vaddr, vaddr))

K1W = 5 * 16384
def gen_k1():
    a = Asm()
    a("s_cmp_ge_u32 s2, 256")
    a("s_cbranch_scc1 K1_end")
    stamps_init(a)
    a("s_load_dwordx4 s[4:7], s[0:1], 0")
    a("s_load_dwordx2 s[8:9], s[0:1], 32")
    a("s_load_dwordx2 s[10:11], s[0:1], 64")
    a("s_load_dwordx2 s[12:13], s[0:1], 88")
    a("v_and_b32 v1, 63, v0")
    a("v_lshrrev_b32 v2, 6, v0")
    a("s_and_b32 s34, s2, 7")
    a("v_readfirstlane_b32 s33, v2")
    a("s_lshr_b32 s35, s2, 3")
    if "scramble" in EXP:
        a("s_add_u32 s34, s34, s35")
        a("s_and_b32 s34, s34, 7")
    a("s_cmp_ge_u32 s35, 24")
    a("s_cbranch_scc1 K1_aux")
    a("s_mul_i32 s36, s35, 43")
    a("s_lshr_b32 s36, s36, 8")
    a("s_mul_i32 s37, s36, 6")
    a("s_sub_u32 s37, s35, s37")
    a("s_lshr_b32 s38, s34, 1")
    a("s_lshl_b32 s38, s38, 2")
    a("s_add_u32 s38, s38, s36")
    a("s_lshr_b32 s39, s37, 1")
    a("s_and_b32 s40, s34, 1")
    a("s_lshl_b32 s40, s40, 1")
    a("s_and_b32 s41, s37, 1")
    a("s_add_u32 s40, s40, s41")
    a("s_cmp_lt_u32 s33, 4")
    a("s_cbranch_scc1 K1_cons")
    a("s_sub_u32 s33, s33, 4")
    a("s_lshl_b32 s41, s39, 9")
    a("s_lshl_b32 s42, s40, 7")
    a("s_add_u32 s41, s41, s42")
    a("s_and_b32 s42, s33, 1")
    a("s_lshl_b32 s42, s42, 2")
    a("v_lshrrev_b32 v3, 4, v1")
    a("v_add_u32 v4, s42, v3")
    a("v_and_b32 v5, 7, v1")
    a("v_xor_b32 v4, v4, v5")
    a("v_lshrrev_b32 v5, 3, v1")
    a("v_lshlrev_b32 v5, 10, v5")
    a("v_lshl_add_u32 v10, v4, 4, v5")
    a("v_lshlrev_b32 v4, 2, v3")
    a("v_and_b32 v5, 15, v1")
    a("v_xor_b32 v4, v4, v5")
    a("v_mul_u32_u24 v5, 3072, v3")
    a("v_lshl_add_u32 v11, v4, 4, v5")
    a("s_lshl_b32 s46, s38, 7")
    a("s_lshl_b32 s44, s33, 3")
    a("s_add_u32 s46, s46, s44")
    a("s_lshl_b32 s46, s46, 10")
    a("s_mul_i32 s47, s33, 12288")
    a("s_lshl_b32 s45, s41, 1")
    a("s_add_u32 s47, s47, s45")
    a("s_lshl_b32 s48, s33, 10")
    if "norot1" in EXP:
        a("s_mov_b32 s57, 0")
    else:
        a("s_lshl_b32 s57, s36, 1")
        a("s_add_u32 s57, s57, s37")
        a("s_and_b32 s57, s57, 7")
    a("s_waitcnt lgkmcnt(0)")
    srd(a, 16, 4, 2048 * 1024)
    srd(a, 20, 6, 512 * 3072)
    stamp(a, 1)
    def issue():
        a("s_lshl_b32 s58, s57, 7")
        a("s_add_u32 s58, s58, s46")
        a("s_mul_i32 s59, s57, 196608")
        a("s_add_u32 s59, s59, s47")
        for u in range(4):
            a("s_add_u32 m0, s48, %d" % (u * 4096))
            a("s_add_u32 s50, s58, %d" % (u * 32768))
            a("buffer_load_dwordx4 v10, s[16:19], s50 offen lds")
            a("s_add_u32 m0, s48, %d" % (K1W + u * 4096))
            a("s_add_u32 s50, s59, %d" % (u * 49152))
            a("buffer_load_dwordx4 v11, s[20:23], s50 offen lds")
        a("s_add_u32 s57, s57, 1")
        a("s_and_b32 s57, s57, 7")
        a("s_add_u32 s48, s48, 16384")
        a("s_cmp_ge_u32 s48, %d" % K1W)
        a("s_cselect_b32 s48, s60, s48")
    a("s_mov_b32 s49, 0")
    a("s_mov_b32 s60, s48")
    a.label("K1_ld")
    issue()
    a("s_add_u32 s49, s49, 1")
    a("s_cmp_lt_u32 s49, 3")
    a("s_cbranch_scc1 K1_ld")
    a("s_cmp_eq_u32 s49, 4")
    a("s_cbranch_scc1 K1_ld")
    a("s_cmp_eq_u32 s49, 5")
    a("s_cbranch_scc0 K1_ld2")
    a("s_waitcnt vmcnt(24)")
    a("s_barrier")
    a.label("K1_ld2")
    a("s_waitcnt vmcnt(16)")
    a("s_barrier")
    a("s_cmp_lt_u32 s49, 8")
    a("s_cbranch_scc1 K1_ld")
    stamp(a, 3)
    a("s_waitcnt vmcnt(8)")
    a("s_barrier")
    a("s_waitcnt vmcnt(0)")
    a("s_barrier")
    if "now1pf" not in EXP and "ldtouch" in EXP:
        a("s_mul_i32 s38, s34, 640")
        a("s_sub_u32 s39, s34, 4")
        a("s_mul_i32 s39, s39, 768")
        a("s_cmp_lt_u32 s34, 4")
        a("s_cselect_b32 s38, s38, s39")
        a("s_movk_i32 s39, 640")
        a("s_cselect_b32 s39, 512, s39")
        a("s_cmp_eq_u32 s34, 7")
        a("s_cselect_b32 s39, 384, s39")
        a("v_and_b32 v12, 7, v1")
        a("v_lshlrev_b32 v12, 7, v12")
        a("v_min_u32 v12, s39, v12")
        a("v_lshrrev_b32 v13, 3, v1")
        a("v_mul_u32_u24 v13, 5504, v13")
        a("v_add_u32 v12, v12, v13")
        a("s_lshl_b32 s40, s35, 2")
        a("s_add_u32 s40, s40, s33")
        a("s_mul_i32 s41, s40, %d" % (8 * 5504))
        a("s_add_u32 s38, s38, s41")
        srd(a, 20, 8, 2048 * 2752)
        a("buffer_load_dword v14, v12, s[20:23], s38 offen")
        a("s_cmp_lt_u32 s40, 32")
        a("s_cbranch_scc0 K1_ldx")
        a("s_add_u32 s38, s38, %d" % (96 * 8 * 5504))
        a("buffer_load_dword v15, v12, s[20:23], s38 offen")
        a.label("K1_ldx")
    stamp_flush(a, 0, 12)
    a("s_endpgm")
    a.label("K1_cons")
    a("s_cmp_eq_u32 s33, 3")
    a("s_cbranch_scc0 K1_ncp")
    code_prefetch(a, "k1n", "k1_kernel", 3, 28, 29)
    a.label("K1_ncp")
    a("s_lshr_b32 s51, s33, 1")
    a("s_and_b32 s52, s33, 1")
    a("v_bfe_u32 v3, v1, 1, 3")
    a("v_lshrrev_b32 v4, 5, v1")
    a("v_xor_b32 v5, v3, v4")
    a("v_and_b32 v6, 31, v1")
    a("s_lshl_b32 s53, s51, 13")
    a("v_lshl_add_u32 v6, v6, 7, s53")
    for ks in range(4):
        a("v_xor_b32 v7, %d, v5" % (2 * ks))
        a("v_lshl_add_u32 v%d, v7, 4, v6" % (12 + ks))
    a("v_bfe_u32 v3, v1, 2, 2")
    a("v_lshl_add_u32 v5, v4, 3, v3")
    a("v_lshlrev_b32 v5, 8, v5")
    a("s_lshl_b32 s53, s52, 1")
    a("v_xor_b32 v6, s53, v3")
    a("v_lshl_add_u32 v5, v6, 6, v5")
    a("v_bfe_u32 v6, v1, 4, 1")
    a("v_lshl_add_u32 v5, v6, 5, v5")
    a("v_and_b32 v6, 3, v1")
    a("v_lshl_add_u32 v5, v6, 3, v5")
    a("v_add_u32 v16, %d, v5" % K1W)
    a("v_xor_b32 v17, 64, v16")
    for i in range(6): a("v_mov_b32 v%d, v%d" % (20 + i, 12 + i))
    ACC = 96
    for i in range(0, 64, 2): a("v_mov_b64 %s, 0" % vr(ACC + i, 2))
    XFR = 32
    def reads(ks, b):
        r = []
        if "k1noread" in EXP: return ["s_nop 0"]
        for t in range(2):
            r.append("ds_read_b128 %s, v%d offset:%d" % (vr(XFR + b * 16 + t * 4, 4), 20 + ks, t * 4096))
        for mt in range(2):
            for rd in range(2):
                r.append("ds_read_b64_tr_b16 %s, v%d offset:%d" % (vr(XFR + b * 16 + 8 + mt * 4 + rd * 2, 2), 24 + mt, ks * 4096 + rd * 1024))
        return r
    def mfmas(b, vtype):
        r = []
        if "k1nomfma" in EXP: return ["s_nop 0"]
        for i in range(2):
            for j in range(2):
                acc = vr(ACC + (i * 2 + j) * 16, 16)
                xf = lambda t: vr(XFR + b * 16 + t * 4, 4)
                wf = lambda t: vr(XFR + b * 16 + 8 + t * 4, 4)
                if vtype: r.append("v_mfma_f32_32x32x16_bf16 %s, %s, %s, %s" % (acc, xf(i), wf(j), acc))
                else: r.append("v_mfma_f32_32x32x16_bf16 %s, %s, %s, %s" % (acc, wf(i), xf(j), acc))
        return r
    a("s_lshl_b32 s53, s40, 3")
    a("s_lshl_b32 s54, s52, 2")
    a("s_add_u32 s53, s53, s54")
    a("s_lshl_b32 s53, s53, 16")
    a("s_lshl_b32 s54, s38, 2")
    a("s_lshl_b32 s55, s51, 1")
    a("s_add_u32 s54, s54, s55")
    a("s_lshl_b32 s54, s54, 10")
    a("s_add_u32 s53, s53, s54")
    a("s_lshl_b32 s54, s39, 21")
    a("s_add_u32 s53, s53, s54")
    a("s_cmp_eq_u32 s39, 0")
    a("s_cselect_b32 s56, %s, 1.0" % f32(QSCALE))
    a("s_mov_b32 s49, 0")
    a("s_mov_b32 s54, 0")
    a("s_waitcnt lgkmcnt(0)")
    srd(a, 24, 12, WS_USED)
    stamp(a, 1)
    a("s_barrier")
    stamp(a, 2)
    for r in reads(0, 0): a(r)
    for r in reads(1, 1): a(r)
    a("s_cmp_eq_u32 s39, 2")
    a("s_cbranch_scc1 K1_loop_v")
    for vtype in (0, 1):
        L = "K1_loop_v" if vtype else "K1_loop_qk"
        a.label(L)
        for ks in range(4):
            if ks == 2:
                a("s_add_u32 s54, s54, 16384")
                a("s_cmp_ge_u32 s54, %d" % K1W)
                a("s_cselect_b32 s54, 0, s54")
                for i in range(6): a("v_add_u32 v%d, s54, v%d" % (20 + i, 12 + i))
                a("s_cmp_eq_u32 s49, 7")
                a("s_cbranch_scc1 %s_nb" % L)
                a("s_barrier")
                a.label(L + "_nb")
            a("s_waitcnt lgkmcnt(6)")
            rd = reads((ks + 2) % 4, (ks + 2) % 4)
            mf = mfmas(ks, vtype)
            for n in range(len(mf)):
                a(mf[n])
                for r in rd[2 * n:2 * n + 2]: a(r)
        a("s_add_u32 s49, s49, 1")
        a("s_cmp_lt_u32 s49, 8")
        a("s_cbranch_scc1 %s" % L)
        a("s_waitcnt lgkmcnt(0)")
        stamp(a, 3)
        if not vtype:
            a("v_lshlrev_b32 v3, 4, v1")
        else:
            a("v_bfe_u32 v3, v1, 4, 1")
            a("v_lshlrev_b32 v3, 16, v3")
            a("v_lshrrev_b32 v4, 5, v1")
            a("v_lshl_add_u32 v3, v4, 8, v3")
            a("v_and_b32 v4, 15, v1")
            a("v_lshl_add_u32 v3, v4, 4, v3")
        a("s_nop 7")
        for i in range(2):
            for j in range(2):
                base = ACC + (i * 2 + j) * 16
                if i == 1 and j == 1: a("s_nop 3")
                for half in range(2):
                    t = 32 + ((i * 4 + j * 2 + half) % 4) * 4
                    for k in range(4):
                        r0 = base + half * 8 + 2 * k
                        if not vtype:
                            a("v_pk_mul_f32 %s, %s, s[56:57] op_sel_hi:[1,0]" % (vr(r0, 2), vr(r0, 2)))
                        a("v_cvt_pk_bf16_f32 v%d, v%d, v%d" % (t + k, r0, r0 + 1))
                    if not vtype:
                        a("s_add_u32 s54, s53, %d" % ((2 * i + half) * 65536))
                        a("buffer_store_dwordx4 %s, v3, s[24:27], s54 offen offset:%d %s" % (vr(t, 4), j * 1024, QKVPOL))
                    else:
                        a("s_add_u32 s54, s53, %d" % (2 * j * 65536))
                        a("buffer_store_dwordx4 %s, v3, s[24:27], s54 offen offset:%d %s" % (vr(t, 4), i * 1024 + half * 512, QKVPOL))
        stamp_flush(a, 0, 12)
        a("s_endpgm")
    a.label("K1_aux")
    RS = 1040
    a("s_sub_u32 s36, s35, 24")
    a("s_lshl_b32 s37, s34, 3")
    a("s_add_u32 s36, s36, s37")
    a("v_lshrrev_b32 v3, 4, v1")
    a("v_and_b32 v4, 15, v1")
    a("v_lshlrev_b32 v5, 4, v4")
    a("v_lshl_add_u32 v6, v3, 10, v5")
    a("v_lshlrev_b32 v7, 4, v1")
    a("s_lshl_b32 s37, s36, 15")
    a("s_lshl_b32 s38, s33, 12")
    a("s_add_u32 s37, s37, s38")
    a("s_waitcnt lgkmcnt(0)")
    srd(a, 16, 4, 2048 * 1024)
    srd(a, 28, 10, 1024)
    XR = 32; GR = 48; D0 = 64; CP = 96
    for t in range(4):
        a("buffer_load_dwordx4 %s, v6, s[16:19], s37 offen offset:%d" % (vr(XR + 4 * t, 4), t * 256))
    for t in range(4):
        a("buffer_load_dwordx4 %s, v5, s[28:31], 0 offen offset:%d" % (vr(GR + 4 * t, 4), t * 256))
    stamp(a, 1)
    srd(a, 20, 8, 2048 * 2752)
    srd(a, 24, 12, WS_USED)
    a("s_lshl_b32 s43, s36, 4")
    a("s_lshl_b32 s44, s33, 1")
    a("s_add_u32 s43, s43, s44")
    a("s_mul_i32 s44, s43, 5504")
    a("s_add_u32 s44, s44, 2752")
    a("s_add_u32 s45, s44, 5504")
    a("s_lshl_b32 s46, s43, 7")
    a("s_add_u32 s46, s46, %d" % W1O)
    a("v_lshrrev_b32 v31, 3, v1")
    a("v_lshlrev_b32 v31, 17, v31")
    a("v_and_b32 v27, 7, v1")
    a("v_lshl_add_u32 v31, v27, 4, v31")
    a("s_mul_i32 s38, s34, 640")
    a("s_sub_u32 s39, s34, 4")
    a("s_mul_i32 s39, s39, 768")
    a("s_cmp_lt_u32 s34, 4")
    a("s_cselect_b32 s38, s38, s39")
    a("s_movk_i32 s39, 640")
    a("s_cselect_b32 s39, 512, s39")
    a("s_cmp_eq_u32 s34, 7")
    a("s_cselect_b32 s39, 384, s39")
    a("v_and_b32 v28, 7, v1")
    a("v_lshlrev_b32 v28, 7, v28")
    a("v_min_u32 v28, s39, v28")
    a("v_lshrrev_b32 v9, 3, v1")
    a("v_mul_u32_u24 v9, 5504, v9")
    a("v_add_u32 v28, v28, v9")
    a("s_sub_u32 s40, s35, 24")
    a("s_lshl_b32 s40, s40, 3")
    a("s_add_u32 s40, s40, s33")
    a("s_mul_i32 s40, s40, %d" % (8 * 5504))
    a("s_add_u32 s38, s38, s40")
    a("v_bfe_u32 v29, v1, 2, 2")
    a("v_lshl_add_u32 v29, v3, 2, v29")
    a("v_and_b32 v30, 3, v1")
    a("v_lshlrev_b32 v30, 3, v30")
    a("v_mul_u32_u24 v29, %d, v29" % (2 * RS))
    a("v_add_u32 v29, v29, v30")
    a("s_lshl_b32 s41, s33, 7")
    a("v_add_u32 v29, s41, v29")
    a("s_mul_i32 s40, s36, 3072")
    a("s_add_u32 s40, s40, %d" % HT)
    for d in range(4):
        a("s_lshl_b32 s41, s33, 2")
        a("s_add_u32 s41, s41, %d" % d)
        a("s_cmp_ge_u32 s41, 30")
        a("s_addc_u32 s41, s41, 0")
        a("s_mul_i32 s42, s41, 43")
        a("s_lshr_b32 s42, s42, 7")
        a("s_mul_i32 s50, s42, 3")
        a("s_sub_u32 s41, s41, s50")
        a("s_lshl_b32 s41, s41, 10")
        a("s_mul_i32 s42, s42, 196608")
        a("s_add_u32 s41, s41, s42")
        a("s_add_u32 s%d, s41, s40" % (52 + d))
    a("s_lshl_b32 s42, s36, 7")
    a("s_lshl_b32 s41, s33, 4")
    a("s_add_u32 s42, s42, s41")
    a("s_add_u32 s42, s42, %d" % GW)
    a("s_lshl_b32 s41, s33, 2")
    a("v_add_u32 v9, s41, v3")
    a("v_mul_u32_u24 v9, %d, v9" % RS)
    a("v_add_u32 v9, v9, v5")
    a("v_lshlrev_b32 v30, 2, v3")
    a("v_mov_b32 v8, 0x3f803f80")
    a("v_mov_b64 v[10:11], 0")
    a("v_mov_b64 v[12:13], 0")
    def w1loads():
        for r in range(2):
            for t in range(3):
                a("buffer_load_dwordx4 %s, v7, s[20:23], s%d offen offset:%d" % (vr(CP + 12 * r + 4 * t, 4), 44 + r, t * 1024))
    NT = 0 if ("now1pf" in EXP or "endtouch" in EXP) else 2
    def touches(n=NT):
        if n and "endtouch" not in EXP: a("s_barrier")
        for t in range(n):
            a("buffer_load_dword v%d, v28, s[20:23], s38 offen" % (24 + t))
            a("s_add_u32 s38, s38, %d" % (512 * 5504))
    if "w1late" not in EXP:
        w1loads(); touches()
    a("s_waitcnt vmcnt(%d)" % (6 + NT if "w1late" not in EXP else 0))
    stamp(a, 2)
    if "w1late" in EXP:
        w1loads(); touches()
    for i in range(16):
        a("v_dot2c_f32_bf16 v%d, v%d, v8" % (10 + (i & 1), XR + i))
        a("v_dot2c_f32_bf16 v%d, v%d, v%d" % (12 + (i & 1), XR + i, GR + i))
    for i in range(16):
        a("v_lshlrev_b32 v%d, 16, v%d" % (D0 + 2 * i, XR + i))
        a("v_and_b32 v%d, 0xffff0000, v%d" % (D0 + 2 * i + 1, XR + i))
    a("v_add_f32 v10, v10, v11")
    a("v_add_f32 v12, v12, v13")
    def red(regs):
        for pat in ("quad_perm:[1,0,3,2]", "quad_perm:[2,3,0,1]", "row_half_mirror", "row_mirror"):
            a("s_nop 1")
            for r in regs:
                a("v_add_f32_dpp v%d, v%d, v%d %s row_mask:0xf bank_mask:0xf" % (r, r, r, pat))
    red([10, 12])
    a("v_mul_f32 v14, %s, v10" % f32(1.0 / 512))
    a("v_mov_b64 v[16:17], 0")
    a("v_mov_b64 v[18:19], 0")
    for i in range(16):
        p = vr(D0 + 2 * i, 2)
        a("v_pk_add_f32 %s, %s, v[14:15] op_sel_hi:[1,0] neg_lo:[0,1] neg_hi:[0,1]" % (p, p))
    for i in range(16):
        p = vr(D0 + 2 * i, 2); ac = vr(16 + 2 * (i & 1), 2)
        a("v_pk_fma_f32 %s, %s, %s, %s" % (ac, p, p, ac))
    a("v_add_f32 v16, v16, v17")
    a("v_add_f32 v18, v18, v19")
    a("v_add_f32 v16, v16, v18")
    red([16])
    a("v_mul_f32 v16, %s, v16" % f32(1.0 / 512))
    a("v_cvt_pk_bf16_f32 v16, v16, v14")
    a("v_cvt_pk_bf16_f32 v12, v12, v12")
    a("v_and_b32 v17, 0xffff0000, v16")
    a("v_lshlrev_b32 v16, 16, v16")
    a("v_lshlrev_b32 v12, 16, v12")
    a("v_add_f32 v16, %s, v16" % f32(1e-5))
    a("v_mul_f32 v12, %s, v12" % f32(-1.4426950408889634))
    a("v_cvt_pk_bf16_f32 v16, v16, v16")
    a("v_exp_f32 v12, v12")
    a("v_lshlrev_b32 v16, 16, v16")
    a("v_sqrt_f32 v16, v16")
    a("v_add_f32 v12, 1.0, v12")
    a("v_cvt_pk_bf16_f32 v16, v16, v16")
    a("v_rcp_f32 v12, v12")
    a("v_lshlrev_b32 v16, 16, v16")
    a("v_rcp_f32 v20, v16")
    a("v_sub_f32 v18, v14, v17")
    a("v_cvt_pk_bf16_f32 v12, v12, v12")
    a("v_mul_f32 v22, v18, v20")
    a("v_lshlrev_b32 v12, 16, v12")
    for t in range(4):
        for k in range(4):
            p = vr(D0 + 2 * (4 * t + k), 2)
            a("v_pk_fma_f32 %s, %s, v[20:21], v[22:23] op_sel_hi:[1,0,0]" % (p, p))
        for k in range(4):
            i = 4 * t + k
            a("v_cvt_pk_bf16_f32 v%d, v%d, v%d" % (XR + i, D0 + 2 * i, D0 + 2 * i + 1))
        a("ds_write_b128 v9, %s offset:%d" % (vr(XR + 4 * t, 4), t * 256))
    a("buffer_store_dword v12, v30, s[24:27], s42 offen")
    a("s_waitcnt lgkmcnt(0)")
    stamp(a, 3)
    a("s_barrier")
    for d in range(4):
        for rd in range(2):
            a("ds_read_b64_tr_b16 %s, v29 offset:%d" % (vr(32 + 4 * d + 2 * rd, 2), 32 * d + rd * RS))
    for d in range(4):
        a("s_waitcnt lgkmcnt(%d)" % (6 - 2 * d))
        a("buffer_store_dwordx4 %s, v7, s[24:27], s%d offen %s" % (vr(32 + 4 * d, 4), 52 + d, AUXPOL))
    a("s_waitcnt vmcnt(%d)" % (NT + 5))
    a("s_cmp_eq_u32 s33, 7")
    a("s_cbranch_scc0 K1_nx")
    a("s_add_u32 s41, s40, %d" % (10 * 196608))
    a("buffer_store_dwordx4 v[36:39], v7, s[24:27], s41 offen %s" % AUXPOL)
    a.label("K1_nx")
    a("s_mov_b32 s48, -1")
    a("s_mov_b32 s49, 0xffff")
    stamp(a, 4)
    for r in range(2):
        for t in range(3):
            if t == 2: a("s_mov_b64 exec, s[48:49]")
            a("s_add_u32 s47, s46, %d" % (t * 8 * 131072))
            a("buffer_store_dwordx4 %s, v31, s[24:27], s47 offen offset:%d %s" % (vr(CP + 12 * r + 4 * t, 4), r * 128, AUXPOL))
            if t == 2: a("s_mov_b64 exec, -1")
    if "endtouch" in EXP: touches(2)
    stamp_flush(a, 0, 12)
    a.label("K1_end")
    a("s_endpgm")
    return a.text(), 160

NRM = 6; MOFF = 33792; CNT = 33280
def lds_sync(a, idx, name, vt):
    a("v_mov_b32 v%d, %d" % (vt, CNT + 4 * idx))
    a("v_mov_b32 v%d, 1" % (vt + 1))
    a("s_mov_b64 exec, 1")
    a("ds_add_u32 v%d, v%d" % (vt, vt + 1))
    a("s_mov_b64 exec, -1")
    a.label(name)
    a("ds_read_b32 v%d, v%d" % (vt + 1, vt))
    a("s_waitcnt lgkmcnt(0)")
    a("v_readfirstlane_b32 s68, v%d" % (vt + 1))
    a("s_cmp_ge_u32 s68, 4")
    a("s_cbranch_scc0 %s" % name)
def gen_k2():
    a = Asm()
    a("s_cmp_ge_u32 s2, 256")
    a("s_cbranch_scc1 K2_end")
    stamps_init(a)
    a("s_load_dwordx4 s[8:11], s[0:1], 32")
    a("s_load_dwordx2 s[12:13], s[0:1], 88")
    a("s_load_dwordx2 s[4:5], s[0:1], 16")
    a("s_load_dwordx2 s[6:7], s[0:1], 48")
    a("v_and_b32 v1, 63, v0")
    a("v_lshrrev_b32 v2, 6, v0")
    a("s_and_b32 s34, s2, 7")
    a("v_readfirstlane_b32 s33, v2")
    a("s_lshr_b32 s35, s2, 3")
    if "scramble" in EXP:
        a("s_add_u32 s34, s34, s35")
        a("s_and_b32 s34, s34, 7")
    a("v_lshlrev_b32 v2, 4, v1")
    a("v_mov_b32 v3, %d" % CNT)
    a("v_mov_b64 v[4:5], 0")
    a("ds_write_b64 v3, v[4:5]")
    a("ds_write_b64 v3, v[4:5] offset:8")
    a("s_waitcnt lgkmcnt(0)")
    a("s_barrier")
    if "swaprole" in EXP:
        a("s_xor_b32 s33, s33, 4")
    a("s_cmp_lt_u32 s33, 4")
    a("s_cbranch_scc1 K2_attn")
    a("s_sub_u32 s33, s33, 4")
    a("s_cmp_eq_u32 s34, 7")
    a("s_cbranch_scc1 K2_d7")
    a("s_cmp_ge_u32 s35, 30")
    a("s_cbranch_scc1 K2_pref")
    a("s_cmp_lt_u32 s34, 4")
    a("s_cbranch_scc0 K2_d5")
    a("s_mul_i32 s36, s34, 5")
    a("s_mov_b32 s37, s35")
    a.label("K2_d6")
    a("s_mul_i32 s38, s37, 43")
    a("s_lshr_b32 s38, s38, 8")
    a("s_mul_i32 s39, s38, 6")
    a("s_sub_u32 s39, s37, s39")
    a("s_add_u32 s38, s38, s36")
    a("s_branch K2_dd")
    a.label("K2_d7")
    a("s_mov_b32 s36, 20")
    a("s_sub_u32 s37, s35, 20")
    a("s_cmp_ge_u32 s35, 20")
    a("s_cbranch_scc1 K2_d6")
    a.label("K2_d5")
    a("s_sub_u32 s36, s34, 4")
    a("s_mul_i32 s36, s36, 6")
    a("s_mul_i32 s38, s35, 52")
    a("s_lshr_b32 s38, s38, 8")
    a("s_mul_i32 s39, s38, 5")
    a("s_sub_u32 s39, s35, s39")
    a("s_add_u32 s39, s39, 6")
    a("s_add_u32 s38, s38, s36")
    a.label("K2_dd")

    a("v_lshrrev_b32 v3, 3, v1")
    a("v_lshlrev_b32 v153, 7, v3")
    a("v_mul_u32_u24 v3, 5504, v3")
    a("v_lshrrev_b32 v4, 4, v1")
    a("v_lshlrev_b32 v4, 1, v4")
    a("v_and_b32 v5, 7, v1")
    a("v_xor_b32 v4, v4, v5")
    a("v_lshl_add_u32 v3, v4, 4, v3")
    a("v_lshl_add_u32 v153, v4, 4, v153")
    a("s_mul_i32 s54, s33, %d" % (256 * 5504))
    a("s_lshl_b32 s40, s38, 7")
    a("s_add_u32 s54, s54, s40")
    a("s_lshl_b32 s53, s33, 15")
    a("s_lshl_b32 s40, s38, 17")
    a("s_add_u32 s53, s53, s40")
    a("s_add_u32 s53, s53, %d" % W1O)
    a("s_mul_i32 s55, s33, %d" % (16 * 3072))
    a("s_mul_i32 s40, s39, 196608")
    a("s_add_u32 s55, s55, s40")
    a("s_add_u32 s55, s55, %d" % HT)
    a("s_mul_i32 s40, s33, %d" % (NRM * 4096))
    a("s_add_u32 s40, s40, %d" % MOFF)
    a("s_waitcnt lgkmcnt(0)")
    srd(a, 16, 8, 2048 * 2752)
    srd(a, 24, 12, WS_USED)
    ACC = 8; AF = 56; BF = 160
    def loads(b):
        r = []
        for q in range(4):
            r.append("s_add_u32 m0, s40, %d" % (b * 4096 + q * 1024))
            if q < 2:
                r.append("s_add_u32 s50, s54, %d" % (q * 8 * 5504))
                r.append("buffer_load_dwordx4 v3, s[16:19], s50 offen lds")
            else:
                r.append("s_add_u32 s50, s53, %d" % ((q - 2) * 1024))
                r.append("buffer_load_dwordx4 v153, s[24:27], s50 offen lds")
        for i in range(3):
            r.append("buffer_load_dwordx4 %s, v2, s[24:27], s55 offen offset:%d" % (vr(BF + 12 * b + 4 * i, 4), i * 1024))
        r.append("s_add_u32 s54, s54, %d" % (16 * 5504))
        r.append("s_add_u32 s53, s53, 2048")
        r.append("s_add_u32 s55, s55, 3072")
        return r
    def trreads(b):
        return ["ds_read_b64_tr_b16 %s, v%d offset:%d" % (vr(AF + 16 * (b & 1) + 4 * e + 2 * rd, 2), 140 + e, b * 4096 + rd * 2048) for e in range(4) for rd in range(2)]
    for b in range(NRM - 1):
        for l in loads(b): a(l)
    stamp(a, 1)
    srd(a, 28, 10, 2752)
    a("v_bfe_u32 v4, v1, 2, 2")
    a("v_lshrrev_b32 v5, 4, v1")
    a("v_lshl_add_u32 v4, v5, 2, v4")
    a("v_bfe_u32 v5, v4, 1, 2")
    a("v_lshlrev_b32 v5, 5, v5")
    a("v_lshl_add_u32 v5, v4, 7, v5")
    a("v_and_b32 v4, 3, v1")
    a("v_lshl_add_u32 v5, v4, 3, v5")
    a("v_add_u32 v140, s40, v5")
    for e in range(1, 4): a("v_xor_b32 v%d, %d, v140" % (140 + e, e << 5))
    for i in range(0, 48, 2): a("v_mov_b64 %s, 0" % vr(ACC + i, 2))
    a("v_lshrrev_b32 v4, 4, v1")
    a("v_lshlrev_b32 v5, 3, v4")
    a("s_lshl_b32 s44, s38, 7")
    a("s_lshl_b32 s45, s33, 5")
    a("s_add_u32 s44, s44, s45")
    a("buffer_load_dwordx2 v[146:147], v5, s[28:31], s44 offen")
    a("v_and_b32 v6, 15, v1")
    a("v_mul_u32_u24 v144, 272, v6")
    a("v_lshl_add_u32 v145, v4, 4, v144")
    a("s_lshl_b32 s45, s33, 6")
    a("v_add_u32 v145, s45, v145")
    a("v_lshl_add_u32 v144, v4, 4, v144")
    a("s_mul_i32 s45, s33, 13056")
    a("s_add_u32 s45, s45, %d" % MOFF)
    a("v_add_u32 v144, s45, v144")
    a("v_add_u32 v145, %d, v145" % MOFF)
    a("s_mul_i32 s45, s39, 48")
    a("s_min_u32 s45, s45, 464")
    a("v_add_u32 v6, s45, v6")
    a("v_lshrrev_b32 v7, 5, v1")
    a("v_bfe_u32 v5, v1, 4, 1")
    a("v_lshlrev_b32 v5, 3, v5")
    a("v_lshl_add_u32 v5, v7, 9, v5")
    a("s_mov_b32 s45, 176128")
    for dt in range(3):
        a("v_add_u32 v7, %d, v6" % (16 * dt))
        a("v_lshrrev_b32 v148, 6, v7")
        a("v_mul_lo_u32 v148, v148, s45")
        a("v_bfe_u32 v149, v7, 5, 1")
        a("v_lshl_add_u32 v148, v149, 10, v148")
        a("v_and_b32 v149, 31, v7")
        a("v_lshl_add_u32 v148, v149, 4, v148")
        a("v_add_u32 v%d, v148, v5" % (150 + dt))
    a("s_lshl_b32 s47, s38, 2")
    a("s_add_u32 s47, s47, s33")
    a("s_lshl_b32 s46, s47, 11")
    a("s_add_u32 s46, s46, %d" % UF)
    a("s_mov_b32 s48, %s" % f32(GC2))
    a("s_mov_b32 s49, %s" % f32(GC1))
    a("s_mov_b32 s44, 0")
    a("s_waitcnt vmcnt(%d)" % (7 * (NRM - 2) + 1))
    if PRIO: a("s_setprio %s" % PRIO)
    for r in trreads(0): a(r)
    def step(b, ld, wait, tr=True, skip=None):
        mf = []
        for ai in range(4):
            for bi in range(3):
                acc = vr(ACC + (ai * 3 + bi) * 4, 4)
                mf.append("v_mfma_f32_16x16x32_bf16 %s, %s, %s, %s" % (acc, vr(AF + 16 * (b & 1) + 4 * ai, 4), vr(BF + 12 * b + 4 * bi, 4), acc))
        if "ldfirst" in EXP:
            if skip:
                a("s_cmp_eq_u32 s44, 1")
                a("s_cbranch_scc1 %s" % skip)
            for l in ld: a(l)
            if ld and not skip: a("s_waitcnt vmcnt(%d)" % (wait + 7))
            elif skip:
                a("s_waitcnt vmcnt(%d)" % (wait + 7))
                a.label(skip)
                a("s_waitcnt vmcnt(%d)" % (wait + 7)) if False else None
                a("s_nop 0")
            if tr:
                if not ld: a("s_waitcnt vmcnt(%d)" % wait)
                if skip:
                    a("s_cmp_eq_u32 s44, 1")
                    a("s_cbranch_scc0 %s_b" % skip)
                    a("s_waitcnt vmcnt(%d)" % wait)
                    a.label(skip + "_b")
                for r in trreads((b + 1) % NRM): a(r)
                a("s_waitcnt lgkmcnt(8)")
            else:
                a("s_waitcnt lgkmcnt(0)")
            for m in mf: a(m)
            return
        if tr:
            a("s_waitcnt vmcnt(%d)" % wait)
            for r in trreads((b + 1) % NRM): a(r)
            a("s_waitcnt lgkmcnt(8)")
        else:
            a("s_waitcnt lgkmcnt(0)")
        if skip:
            for m in mf[:4]: a(m)
            a("s_cmp_eq_u32 s44, 1")
            a("s_cbranch_scc1 %s" % skip)
            for l in ld: a(l)
            a.label(skip)
            for m in mf[4:]: a(m)
            return
        n = 0
        for m in mf:
            a(m)
            for _ in range(2):
                if n < len(ld): a(ld[n]); n += 1
    W = 7 * (NRM - 3)
    a.label("K2_mloop")
    for b in range(NRM): step(b, loads((b + NRM - 1) % NRM), W, skip="K2_msk" if b == NRM - 1 else None)
    a("s_add_u32 s44, s44, 1")
    a("s_cmp_lt_u32 s44, 2")
    a("s_cbranch_scc1 K2_mloop")
    step(0, [], 14)
    step(1, [], 7)
    step(2, [], 0)
    step(3, [], 0, tr=False)
    stamp(a, 2)
    if "nopref" not in EXP and "notailpf" not in EXP:
        a("s_mul_i32 s44, s38, 11")
        a("s_add_u32 s44, s44, s39")
        a("s_mul_i32 s45, s33, 242")
        a("s_add_u32 s44, s44, s45")
        a("s_cmp_lt_u32 s44, %d" % (3 * (232 - PFSPLIT)))
        a("s_cbranch_scc0 K2_np")
        a("s_mul_i32 s45, s44, 683")
        a("s_lshr_b32 s45, s45, 11")
        a("s_mul_i32 s50, s45, 3")
        a("s_sub_u32 s50, s44, s50")
        a("s_mul_i32 s50, s50, 232")
        a("s_add_u32 s50, s50, s45")
        a("s_add_u32 s50, s50, %d" % PFSPLIT)
        a("s_lshl_b32 s50, s50, 13")
        srd(a, 16, 6, 1376 * 4096)
        a("v_lshlrev_b32 v154, 7, v1")
        a("buffer_load_dword v155, v154, s[16:19], s50 offen")
        a.label("K2_np")
    lds_sync(a, 1, "K2_sy1", 4)
    for ai in range(4):
        for bi in range(3):
            a("ds_write_b128 v144, %s offset:%d" % (vr(ACC + (ai * 3 + bi) * 4, 4), bi * 16 * 272 + ai * 64))
    for j in range(2):
        a("v_lshlrev_b32 v%d, 16, v%d" % (136 + 2 * j, 146 + j))
        a("v_and_b32 v%d, 0xffff0000, v%d" % (137 + 2 * j, 146 + j))
    a("s_waitcnt lgkmcnt(0)")
    lds_sync(a, 2, "K2_sy2", 4)
    a("s_cmp_ge_u32 s47, 86")
    a("s_cbranch_scc1 K2_mdone")
    R = 56
    for k in range(3):
        for wv in range(4):
            a("ds_read_b128 %s, v145 offset:%d" % (vr(R + 16 * k + 4 * wv, 4), wv * 13056 + k * 16 * 272))
    for k in range(3):
        r = R + 16 * k
        a("s_waitcnt lgkmcnt(%d)" % (8 - 4 * k))
        a("v_pk_add_f32 %s, %s, %s" % (vr(r, 2), vr(r, 2), vr(r + 4, 2)))
        a("v_pk_add_f32 %s, %s, %s" % (vr(r + 2, 2), vr(r + 2, 2), vr(r + 6, 2)))
        a("v_pk_add_f32 %s, %s, %s" % (vr(r + 8, 2), vr(r + 8, 2), vr(r + 12, 2)))
        a("v_pk_add_f32 %s, %s, %s" % (vr(r + 10, 2), vr(r + 10, 2), vr(r + 14, 2)))
        a("v_pk_add_f32 %s, %s, %s" % (vr(r, 2), vr(r, 2), vr(136, 2)))
        a("v_pk_add_f32 %s, %s, %s" % (vr(r + 2, 2), vr(r + 2, 2), vr(138, 2)))
        a("v_pk_add_f32 %s, %s, %s" % (vr(r, 2), vr(r, 2), vr(r + 8, 2)))
        a("v_pk_add_f32 %s, %s, %s" % (vr(r + 2, 2), vr(r + 2, 2), vr(r + 10, 2)))
        a("v_pk_mul_f32 %s, %s, %s" % (vr(r + 8, 2), vr(r, 2), vr(r, 2)))
        a("v_pk_mul_f32 %s, %s, %s" % (vr(r + 10, 2), vr(r + 2, 2), vr(r + 2, 2)))
        for j in range(4): a("v_mov_b32 v%d, s49" % (r + 12 + j))
        for j in range(4): a("v_fmac_f32 v%d, s48, v%d" % (r + 12 + j, r + 8 + j))
        a("v_pk_mul_f32 %s, %s, %s" % (vr(r + 8, 2), vr(r, 2), vr(r + 12, 2)))
        a("v_pk_mul_f32 %s, %s, %s" % (vr(r + 10, 2), vr(r + 2, 2), vr(r + 14, 2)))
        for j in range(4): a("v_exp_f32 v%d, v%d" % (r + 8 + j, r + 8 + j))
        for j in range(4): a("v_add_f32 v%d, 1.0, v%d" % (r + 8 + j, r + 8 + j))
        for j in range(4): a("v_rcp_f32 v%d, v%d" % (r + 8 + j, r + 8 + j))
        a("s_nop 0")
        a("v_pk_mul_f32 %s, %s, %s" % (vr(r, 2), vr(r, 2), vr(r + 8, 2)))
        a("v_pk_mul_f32 %s, %s, %s" % (vr(r + 2, 2), vr(r + 2, 2), vr(r + 10, 2)))
        a("v_cvt_pk_bf16_f32 v%d, v%d, v%d" % (r + 4, r, r + 1))
        a("v_cvt_pk_bf16_f32 v%d, v%d, v%d" % (r + 5, r + 2, r + 3))
        a("buffer_store_dwordx2 %s, v%d, s[24:27], s46 offen" % (vr(r + 4, 2), 150 + k))
    a.label("K2_mdone")
    stamp(a, 3)
    stamp_flush(a, 1, 12)
    a("s_endpgm")
    a.label("K2_pref")
    if "nopref" in EXP: a("s_endpgm")
    a("s_lshl_b32 s36, s34, 1")
    a("s_add_u32 s36, s36, s35")
    a("s_sub_u32 s36, s36, 30")
    a("s_lshl_b32 s36, s36, 2")
    a("s_add_u32 s36, s36, s33")
    a("v_lshlrev_b32 v4, 7, v1")
    a("s_waitcnt lgkmcnt(0)")
    srd(a, 16, 6, 1376 * 4096)
    srd(a, 20, 4, 512 * 1024)
    if "nocolpf" not in EXP:
        a("s_and_b32 s40, s36, 7")
        a("v_lshlrev_b32 v5, 10, v1")
        a("s_lshl_b32 s41, s40, 16")
        a("s_add_u32 s41, s41, 384")
        a("buffer_load_dword v9, v5, s[20:23], s41 offen")
        a("s_and_b32 s41, s34, 1")
        a("s_cmp_eq_u32 s41, 0")
        a("s_cbranch_scc0 K2_pf1")
        a("v_lshlrev_b32 v5, 12, v1")
        a("s_lshl_b32 s41, s40, 18")
        a("s_lshl_b32 s42, s34, 9")
        a("s_add_u32 s41, s41, s42")
        a("s_add_u32 s41, s41, 384")
        for u in range(3):
            a("buffer_load_dword v9, v5, s[16:19], s41 offen")
            a("s_add_u32 s41, s41, %d" % (8 << 18))
    a.label("K2_pf1")
    a("s_cmp_lt_u32 s36, 64")
    a("s_cbranch_scc0 K2_pf2")
    a("s_lshl_b32 s39, s36, 13")
    a("buffer_load_dword v8, v4, s[20:23], s39 offen")
    a("s_add_u32 s36, s36, 56")
    a("s_branch K2_pf1")
    a.label("K2_pf2")
    a("s_sub_u32 s37, s36, 64")
    a("s_mul_i32 s38, s37, 171")
    a("s_lshr_b32 s38, s38, 9")
    a("s_mul_i32 s39, s38, 3")
    a("s_sub_u32 s39, s37, s39")
    a("s_mul_i32 s39, s39, 232")
    a("s_add_u32 s39, s39, s38")
    a("s_lshl_b32 s39, s39, 13")
    a("buffer_load_dword v8, v4, s[16:19], s39 offen")
    a("s_add_u32 s36, s36, 56")
    a("s_cmp_lt_u32 s36, %d" % (64 + 3 * PFSPLIT))
    a("s_cbranch_scc1 K2_pf2")
    stamp_flush(a, 1, 12)
    a("s_endpgm")
    a.label("K2_attn")
    if "noattn" in EXP: a("s_endpgm")
    VS = 1056; VOFF = 16384
    if "swaprole" in EXP: a("s_setprio 3")
    a("s_lshl_b32 s36, s34, 2")
    a("s_and_b32 s37, s35, 3")
    a("s_add_u32 s36, s36, s37")
    a("s_lshr_b32 s37, s35, 2")
    a("s_lshl_b32 s38, s36, 16")
    a("s_add_u32 s39, s38, %d" % KF)
    a("s_add_u32 s40, s38, %d" % VF)
    a("s_lshl_b32 s41, s37, 3")
    a("s_add_u32 s41, s41, s33")
    a("s_lshl_b32 s42, s41, 10")
    a("s_add_u32 s42, s42, s38")
    a("s_add_u32 s43, s42, 4096")
    a("s_lshl_b32 s44, s37, 3")
    a("s_lshl_b32 s45, s33, 2")
    a("s_add_u32 s44, s44, s45")
    a("s_sub_u32 s44, s44, 8")
    a("v_lshrrev_b32 v3, 5, v1")
    a("v_lshlrev_b32 v200, 9, v3")
    a("s_lshl_b32 s45, s33, 12")
    a("s_mul_i32 s46, s33, %d" % (4 * VS))
    a("s_add_u32 s46, s46, %d" % VOFF)
    a("v_mov_b32 v203, s46")
    a("s_lshl_b32 s50, s44, 10")
    a("s_cmp_lt_i32 s44, 0")
    a("s_cselect_b64 s[48:49], -1, 0")
    a("s_cselect_b32 s51, 0, s50")
    a("s_cselect_b32 s52, 0, 1024")
    a("s_cselect_b32 s50, %d, s50" % BIG)
    a("s_cselect_b32 s56, 0, 0x3f803f80")
    a("v_cndmask_b32 v202, v2, v200, s[48:49]")
    a("v_mov_b32 v204, s56")
    a("v_mov_b32 v205, s56")
    a("s_waitcnt lgkmcnt(0)")
    srd_off(a, 16, 12, 39, 65536)
    srd_off(a, 20, 12, 40, 65536)
    srd(a, 24, 12, WS_USED)
    a("buffer_load_dwordx4 v[4:7], v2, s[24:27], s42 offen")
    for u in range(4):
        a("s_add_u32 m0, s45, %d" % (u * 1024))
        a("s_nop 0")
        a("buffer_load_dwordx4 v202, s[16:19], s51 offen lds")
        a("s_add_u32 m0, s46, %d" % (u * VS))
        a("s_add_u32 s51, s51, s52")
        a("buffer_load_dwordx4 v2, s[20:23], s50 offen lds")
        a("s_add_u32 s50, s50, 1024")
        a("ds_write_b64 v203, v[204:205] offset:%d" % (u * VS + 1024))
        a("ds_write_b64 v203, v[204:205] offset:%d" % (u * VS + 1032))
    a("buffer_load_dwordx4 v[208:211], v2, s[24:27], s43 offen")
    if "swaprole" in EXP: a("s_setprio 0")
    stamp(a, 1)
    KB = 8; VB = 20; PB = 36; SB = 48; COLD = 96; CDIAG = 112; CN = 128; OA = 144; C2O = 160; C2D = 176
    a("v_and_b32 v200, 31, v1")
    a("v_lshlrev_b32 v201, 2, v3")
    a("v_sub_u32 v200, v200, v201")
    a("v_mov_b32 v201, %s" % f32(NEGBIG))
    a("v_mov_b32 v202, 0")
    for i0 in range(0, 16, 4):
        for i in range(i0, i0 + 4):
            a("v_cmp_le_i32 s[%d:%d], %d, v200" % (56 + 2 * (i - i0), 57 + 2 * (i - i0), 8 * (i // 4) + i % 4))
        for i in range(i0, i0 + 4):
            m = "s[%d:%d]" % (56 + 2 * (i - i0), 57 + 2 * (i - i0))
            a("v_cndmask_b32 v%d, v201, v202, %s" % (CDIAG + i, m))
            a("v_cndmask_b32 v%d, v202, v201, %s" % (COLD + i, m))
    a("s_lshl_b32 s45, s33, 10")
    a("v_add_u32 v200, s45, v2")
    a("s_mul_i32 s45, s33, %d" % VS)
    a("s_add_u32 s45, s45, %d" % VOFF)
    a("v_and_b32 v204, 15, v1")
    a("v_lshlrev_b32 v204, 4, v204")
    a("v_lshl_add_u32 v204, v3, 8, v204")
    a("v_add_u32 v204, s45, v204")
    a("v_add_u32 v205, 512, v204")
    a("v_bfe_u32 v206, v1, 4, 1")
    a("v_cmp_eq_u32 vcc, 1, v206")
    a("s_add_u32 s45, s45, 1024")
    a("v_mov_b32 v206, s45")
    a("s_lshr_b32 s45, s41, 1")
    a("v_cndmask_b32 v204, v204, v206, vcc")
    a("v_cndmask_b32 v205, v205, v206, vcc")
    a("s_lshl_b32 s45, s45, 16")
    a("s_lshl_b32 s46, s36, 11")
    a("s_add_u32 s45, s45, s46")
    a("s_and_b32 s46, s41, 1")
    a("s_lshl_b32 s46, s46, 10")
    a("s_add_u32 s45, s45, s46")
    a("s_add_u32 s45, s45, %d" % OF)
    a("s_mov_b32 s47, 0")
    a("s_waitcnt vmcnt(0) lgkmcnt(0)")
    lds_sync(a, 0, "K2_sy0", 202)
    stamp(a, 2)
    if "attnloadonly" in EXP: a("s_endpgm")
    a.label("K2_aloop")
    kread = lambda p: "ds_read_b128 %s, v200 offset:%d" % (vr(KB + 4 * (p % 3), 4), p * 1024)
    S = lambda i: SB + 16 * i
    def maxops(sb):
        for i in range(0, 16, 2):
            m = 202 + ((i // 2) & 1)
            a("v_max3_f32 v%d, v%d, v%d, v%d" % (m, m, sb + i, sb + i + 1))
    for p in range(3): a(kread(p))
    a("v_mov_b32 v202, %s" % f32(NEGBIG))
    a("v_mov_b32 v203, %s" % f32(NEGBIG))
    for i in range(0, 16, 2): a("v_mov_b64 %s, 0" % vr(OA + i, 2))
    for p in range(9):
        a("s_waitcnt lgkmcnt(%d)" % min(2, 8 - p))
        c = vr(COLD, 16) if p == 0 else (vr(CDIAG, 16) if p == 8 else "0")
        a("v_mfma_f32_32x32x16_bf16 %s, %s, v[4:7], %s" % (vr(S(p % 3), 16), vr(KB + 4 * (p % 3), 4), c))
        if p + 3 < 9: a(kread(p + 3))
        if p >= 1:
            a("s_nop 7" if p == 1 else "s_nop 1")
            maxops(S((p - 1) % 3))
    for p in range(3): a(kread(p))
    a("s_nop 7")
    maxops(S(8 % 3))
    a("v_max_f32 v202, v202, v203")
    a("v_mov_b32 v203, v202")
    a("s_nop 1")
    a("v_permlane32_swap_b32 v202, v203")
    a("v_max_f32 v202, v202, v203")
    for i in range(0, 16, 2):
        a("v_pk_add_f32 %s, %s, v[202:203] op_sel_hi:[1,0] neg_lo:[0,1] neg_hi:[0,1]" % (vr(C2O + i, 2), vr(COLD + i, 2)))
    a("v_sub_f32 v%d, 0, v202" % CN)
    a("v_sub_f32 v%d, 0, v202" % (CN + 1))
    for i in range(2, 16, 2): a("v_mov_b64 %s, %s" % (vr(CN + i, 2), vr(CN, 2)))
    for i in range(0, 16, 2):
        a("v_pk_add_f32 %s, %s, v[202:203] op_sel_hi:[1,0] neg_lo:[0,1] neg_hi:[0,1]" % (vr(C2D + i, 2), vr(CDIAG + i, 2)))
    def vread(p):
        return ["ds_read_b128 %s, v%d offset:%d" % (vr(VB + 8 * (p % 2) + 4 * i, 4), 204 + i, p * VS) for i in range(2)]
    def smfma(p):
        c = vr(C2O, 16) if p == 0 else (vr(C2D, 16) if p == 8 else vr(CN, 16))
        a("v_mfma_f32_32x32x16_bf16 %s, %s, v[4:7], %s" % (vr(S(p % 2), 16), vr(KB + 4 * (p % 3), 4), c))
    for r in vread(0): a(r)
    a("s_waitcnt lgkmcnt(4)")
    smfma(0)
    a(kread(3))
    for p in range(9):
        if p + 1 < 9:
            a("s_waitcnt lgkmcnt(%d)" % P2_WAIT_K[p])
            smfma(p + 1)
            for r in vread(p + 1): a(r)
            if p + 4 < 9: a(kread(p + 4))
            if p == 0: a("s_nop 7")
        sb = S(p % 2)
        if "noexp" not in EXP:
            for i in range(16): a("v_exp_f32 v%d, v%d" % (sb + i, sb + i))
        else: a("s_nop 7")
        for i in range(8): a("v_cvt_pk_bf16_f32 v%d, v%d, v%d" % (PB + i, sb + 2 * i, sb + 2 * i + 1))
        a("s_waitcnt lgkmcnt(%d)" % P2_WAIT_V[p])
        a("s_nop 0")
        for i in range(2):
            a("v_mfma_f32_32x32x16_bf16 %s, %s, %s, %s" % (vr(OA, 16), vr(VB + 8 * (p % 2) + 4 * i, 4), vr(PB + 4 * i, 4), vr(OA, 16)))
    a("v_add_u32 v200, 4096, v200")
    a("v_add_u32 v204, %d, v204" % (4 * VS))
    a("v_add_u32 v205, %d, v205" % (4 * VS))
    a("v_mov_b64 v[4:5], v[208:209]")
    a("v_mov_b64 v[6:7], v[210:211]")
    a("s_nop 7")
    a("v_rcp_f32 v202, v%d" % (OA + 8))
    a("s_nop 0")
    for i in range(0, 8, 2): a("v_pk_mul_f32 %s, %s, v[202:203] op_sel_hi:[1,0]" % (vr(OA + i, 2), vr(OA + i, 2)))
    for i in range(4): a("v_cvt_pk_bf16_f32 v%d, v%d, v%d" % (212 + i, OA + 2 * i, OA + 2 * i + 1))
    a("buffer_store_dwordx4 v[212:215], v2, s[24:27], s45 offen %s" % K2POL)
    a("s_add_u32 s45, s45, %d" % (2 * 65536))
    a("s_add_u32 s47, s47, 1")
    if STAMPS:
        a("s_cmp_eq_u32 s47, 1")
        a("s_cbranch_scc0 K2_st4")
        stamp(a, 3)
        a.label("K2_st4")
    a("s_cmp_lt_u32 s47, 2")
    a("s_cbranch_scc1 K2_aloop")
    stamp(a, 4)
    a("s_cmp_eq_u32 s33, 3")
    a("s_cbranch_scc0 K2_ncp")
    code_prefetch(a, "k2", "k3_kernel", 1, 8, 9)
    a.label("K2_ncp")
    if "l2pf3" in EXP:
        a("s_lshl_b32 s36, s35, 2")
        a("s_add_u32 s36, s36, s33")
        a("v_lshrrev_b32 v8, 3, v1")
        a("v_lshlrev_b32 v8, 12, v8")
        a("v_and_b32 v9, 7, v1")
        a("v_lshl_add_u32 v8, v9, 7, v8")
        a("v_lshrrev_b32 v9, 2, v1")
        a("v_lshlrev_b32 v9, 10, v9")
        a("v_and_b32 v10, 3, v1")
        a("v_lshl_add_u32 v9, v10, 7, v9")
        a("s_lshr_b32 s37, s34, 1")
        a("s_lshl_b32 s37, s37, 10")
        a("s_and_b32 s38, s34, 1")
        a("s_lshl_b32 s38, s38, 9")
        srd(a, 16, 6, 1376 * 4096)
        srd(a, 20, 4, 512 * 1024)
        a("s_lshl_b32 s39, s36, 15")
        a("s_add_u32 s39, s39, s37")
        a("buffer_load_dword v11, v8, s[16:19], s39 offen")
        a("s_add_u32 s36, s36, 128")
        a("s_cmp_lt_u32 s36, 172")
        a("s_cbranch_scc0 K2_l2a")
        a("s_add_u32 s39, s39, %d" % (128 << 15))
        a("buffer_load_dword v12, v8, s[16:19], s39 offen")
        a("s_branch K2_l2b")
        a.label("K2_l2a")
        a("s_cmp_lt_u32 s36, 204")
        a("s_cbranch_scc0 K2_l2b")
        a("s_sub_u32 s39, s36, 172")
        a("s_lshl_b32 s39, s39, 14")
        a("s_add_u32 s39, s39, s38")
        a("buffer_load_dword v12, v9, s[20:23], s39 offen")
        a.label("K2_l2b")
    stamp_flush(a, 1, 12)
    a.label("K2_end")
    a("s_endpgm")
    return a.text(), 232
PFSPLIT = int(os.environ.get("PFSPLIT", "72"))

def _p2_waits():
    q = ["K0", "K1", "K2", "V0a", "V0b", "K3"]
    wk, wv = [], []
    def need(name): return len(q) - 1 - q.index(name)
    for p in range(9):
        if p + 1 < 9:
            wk.append(need("K%d" % (p + 1)))
            q.extend(["V%da" % (p + 1), "V%db" % (p + 1)])
            if p + 4 < 9: q.append("K%d" % (p + 4))
        wv.append(need("V%db" % p))
    return wk, wv
P2_WAIT_K, P2_WAIT_V = _p2_waits()

def gen_k3():
    a = Asm()
    a("s_cmp_ge_u32 s2, 256")
    a("s_cbranch_scc1 K3_end")
    stamps_init(a)
    a("s_load_dwordx2 s[4:5], s[0:1], 16")
    a("s_load_dwordx4 s[8:11], s[0:1], 48")
    a("s_load_dwordx2 s[14:15], s[0:1], 72")
    a("s_load_dwordx2 s[12:13], s[0:1], 88")
    a("v_and_b32 v1, 63, v0")
    a("v_lshrrev_b32 v2, 6, v0")
    a("s_and_b32 s34, s2, 7")
    a("v_readfirstlane_b32 s33, v2")
    a("s_lshr_b32 s35, s2, 3")
    if "scramble" in EXP:
        a("s_add_u32 s34, s34, s35")
        a("s_and_b32 s34, s34, 7")
    a("v_lshlrev_b32 v2, 4, v1")
    if "k3part0" in EXP:
        a("s_lshr_b32 s36, s34, 1")
        a("s_lshl_b32 s36, s36, 3")
        a("s_lshr_b32 s37, s35, 2")
        a("s_add_u32 s36, s36, s37")
        a("s_and_b32 s37, s34, 1")
        a("s_lshl_b32 s37, s37, 2")
        a("s_and_b32 s38, s35, 3")
        a("s_add_u32 s37, s37, s38")
    else:
        a("s_lshl_b32 s36, s34, 2")
        a("s_lshr_b32 s37, s35, 3")
        a("s_add_u32 s36, s36, s37")
        a("s_and_b32 s37, s35, 7")
    a("v_lshrrev_b32 v3, 3, v1")
    a("v_bfe_u32 v4, v1, 4, 1")
    a("v_lshlrev_b32 v4, 2, v4")
    a("v_and_b32 v5, 7, v1")
    a("v_xor_b32 v4, v4, v5")
    a("v_lshlrev_b32 v4, 4, v4")
    a("s_lshl_b32 s40, s33, 14")
    ACC = 16; BUF = 80; WF = 144
    NR = 8
    a("s_cmp_eq_u32 s33, 0")
    a("s_cbranch_scc0 K3_mlp2")
    for role in (0, 1):
        if role == 0:
            a("v_lshl_add_u32 v8, v3, 10, v4")
            RDS = 1024; RSTR = 1024; HFSH = 9
            a("s_lshl_b32 s41, s37, 7")
            a("s_lshl_b32 s42, s36, 16")
            a("s_add_u32 s42, s42, %d" % OF)
            a("s_sub_u32 s46, %d, s41" % (512 * 1024))
            a("s_mov_b32 s44, 32")
            if "k3prio" in EXP: a("s_setprio 1")
            a("s_waitcnt lgkmcnt(0)")
            srd_off(a, 16, 4, 41, "s46")
            srd_off(a, 20, 12, 42, 32 * 2048)
        else:
            a.label("K3_mlp2")
            a("v_lshl_add_u32 v8, v3, 12, v4")
            RDS = 512; RSTR = 4096; HFSH = 10
            a("s_sub_u32 s43, s33, 1")
            a("s_mul_i32 s43, s43, 29")
            a("s_cmp_eq_u32 s33, 3")
            a("s_cselect_b32 s44, 28, 29")
            a("s_lshl_b32 s41, s43, 16")
            a("s_lshl_b32 s45, s36, 7")
            a("s_add_u32 s41, s41, s45")
            a("s_mul_i32 s42, s37, 176128")
            a("s_lshl_b32 s46, s43, 11")
            a("s_add_u32 s42, s42, s46")
            a("s_add_u32 s42, s42, %d" % UF)
            a("s_lshl_b32 s46, s44, 16")
            a("s_sub_u32 s46, s46, s45")
            a("s_lshl_b32 s47, s44, 11")
            a("s_waitcnt lgkmcnt(0)")
            srd_off(a, 16, 8, 41, "s46")
            srd_off(a, 20, 12, 42, "s47")
        def loads(b):
            r = []
            r.append("s_add_u32 m0, s40, %d" % (b * 2048))
            r.append("s_add_u32 s50, s48, %d" % (8 * RSTR))
            r.append("buffer_load_dwordx4 v8, s[16:19], s48 offen lds")
            r.append("s_add_u32 m0, s40, %d" % (b * 2048 + 1024))
            r.append("buffer_load_dwordx4 %s, v2, s[20:23], s49 offen" % vr(BUF + 8 * b, 4))
            r.append("buffer_load_dwordx4 v8, s[16:19], s50 offen lds")
            r.append("buffer_load_dwordx4 %s, v2, s[20:23], s49 offen offset:1024" % vr(BUF + 8 * b + 4, 4))
            r.append("s_add_u32 s48, s48, %d" % (16 * RSTR))
            r.append("s_add_u32 s49, s49, 2048")
            if "norot3" not in EXP:
                r.append("s_cmp_eq_u32 s49, s57")
                r.append("s_cselect_b32 s48, 0, s48")
                r.append("s_cselect_b32 s49, 0, s49")
            return r
        def trreads(b):
            r = []
            if "k3notr" in EXP: return ["s_nop 0"]
            for mt in range(2):
                for rd in range(2):
                    r.append("ds_read_b64_tr_b16 %s, v%d offset:%d" % (vr(WF + 8 * (b & 1) + 4 * mt + 2 * rd, 2), 10 + mt, b * 2048 + rd * RDS))
            return r
        if "norot3" in EXP:
            a("s_mov_b32 s48, 0")
            a("s_mov_b32 s49, 0")
        else:
            a("s_lshr_b32 s53, s35, 2")
            a("s_lshl_b32 s53, s53, 2")
            a("s_and_b32 s54, s35, 3")
            a("s_mul_i32 s54, s54, 7")
            a("s_add_u32 s53, s53, s54")
            a("s_sub_u32 s54, s53, s44")
            a("s_cmp_ge_u32 s53, s44")
            a("s_cselect_b32 s53, s54, s53")
            a("s_lshl_b32 s48, s53, %d" % ((16 * RSTR).bit_length() - 1))
            a("s_lshl_b32 s49, s53, 11")
            a("s_lshl_b32 s57, s44, 11")
        for b in range(NR - 1):
            for l in loads(b): a(l)
        stamp(a, 1)
        a("v_bfe_u32 v6, v1, 2, 2")
        a("v_lshlrev_b32 v6, 7, v6")
        a("v_bfe_u32 v7, v1, 3, 1")
        a("v_lshl_add_u32 v6, v7, 6, v6")
        a("v_bfe_u32 v7, v1, 4, 1")
        a("v_lshl_add_u32 v6, v7, 5, v6")
        a("v_and_b32 v7, 3, v1")
        a("v_lshl_add_u32 v6, v7, 3, v6")
        a("v_add_u32 v6, s40, v6")
        a("v_lshrrev_b32 v7, 5, v1")
        a("v_lshl_add_u32 v10, v7, %d, v6" % HFSH)
        a("v_xor_b32 v11, 64, v10")
        for i in range(0, 64, 2): a("v_mov_b64 %s, 0" % vr(ACC + i, 2))
        a("s_sub_u32 s51, s44, 2")
        a("s_waitcnt vmcnt(%d)" % (4 * (NR - 2)))
        for r in trreads(0): a(r)
        L = "K3_loop%d" % role
        a.label(L)
        for b in range(NR):
            nb = (b + 1) % NR
            a("s_cmp_lt_i32 s51, 5")
            a("s_cbranch_scc1 %s_t%d" % (L, b))
            a("s_waitcnt vmcnt(%d)" % (4 * (NR - 3)))
            a.label("%s_r%d" % (L, b))
            for r in trreads(nb): a(r)
            a("s_waitcnt lgkmcnt(4)")
            mf = []
            for i in range(2):
                for j in range(2):
                    acc = vr(ACC + (i * 2 + j) * 16, 16)
                    wf = lambda t: vr(WF + 8 * (b & 1) + 4 * t, 4)
                    af = lambda t: vr(BUF + 8 * b + 4 * t, 4)
                    if role == 0: mf.append("v_mfma_f32_32x32x16_bf16 %s, %s, %s, %s" % (acc, wf(i), af(j), acc))
                    else: mf.append("v_mfma_f32_32x32x16_bf16 %s, %s, %s, %s" % (acc, af(i), wf(j), acc))
            if "k3nomfma" in EXP: mf = ["s_nop 0"] * 4
            a(mf[0]); a(mf[1])
            a("s_cmp_lt_i32 s51, 6")
            a("s_cbranch_scc1 %s_s%d" % (L, b))
            for l in loads((b + NR - 1) % NR): a(l)
            a.label("%s_s%d" % (L, b))
            a(mf[2]); a(mf[3])
            a("s_sub_u32 s51, s51, 1")
            a("s_cmp_lt_i32 s51, -1")
            if b < NR - 1: a("s_cbranch_scc1 K3_red")
            else:
                a("s_cbranch_scc0 %s" % L)
                a("s_branch K3_red")
        for b in range(NR):
            a.label("%s_t%d" % (L, b))
            a("s_cmp_lt_i32 s51, 2")
            a("s_cbranch_scc1 %s_u%d" % (L, b))
            a("s_waitcnt vmcnt(8)")
            a("s_branch %s_r%d" % (L, b))
            a.label("%s_u%d" % (L, b))
            a("s_waitcnt vmcnt(0)")
            a("s_branch %s_r%d" % (L, b))
    a.label("K3_red")
    stamp(a, 2)
    srd(a, 24, 12, WS_USED)
    srd(a, 28, 10, 4096)
    srd(a, 44, 14, 2048 * 1024)
    a("s_lshl_b32 s52, s36, 6")
    a("s_lshl_b32 s53, s33, 4")
    a("s_add_u32 s52, s52, s53")
    a("s_lshl_b32 s53, s52, 2")
    a("s_add_u32 s53, s53, %d" % GW)
    a("s_lshl_b32 s54, s52, 1")
    a("v_lshlrev_b32 v4, 2, v3")
    a("v_lshlrev_b32 v5, 1, v3")
    a("buffer_load_dword v12, v4, s[24:27], s53 offen")
    a("buffer_load_dword v13, v4, s[24:27], s53 offen offset:32")
    a("buffer_load_ushort v14, v5, s[28:31], s54 offen")
    a("buffer_load_ushort v15, v5, s[28:31], s54 offen offset:16")
    RST = 272; WB = 64 * RST
    a("v_and_b32 v6, 31, v1")
    a("v_mul_u32_u24 v6, %d, v6" % RST)
    a("v_lshl_add_u32 v6, v7, 4, v6")
    a("s_mul_i32 s55, s33, %d" % WB)
    a("s_add_u32 s55, s55, 65536")
    a("v_add_u32 v6, s55, v6")
    for i in range(2):
        for j in range(2):
            for g in range(4):
                a("ds_write_b128 v6, %s offset:%d" % (vr(ACC + (i * 2 + j) * 16 + 4 * g, 4), j * 32 * RST + i * 128 + g * 32))
    a("s_lshl_b32 s55, s33, 4")
    a("v_add_u32 v6, s55, v3")
    a("v_mul_u32_u24 v6, %d, v6" % RST)
    a("v_and_b32 v8, 7, v1")
    a("v_lshl_add_u32 v6, v8, 5, v6")
    a("v_add_u32 v6, 65536, v6")
    a("v_lshlrev_b32 v8, 4, v8")
    a("v_lshl_add_u32 v8, v3, 10, v8")
    a("s_lshl_b32 s55, s52, 10")
    a("s_lshl_b32 s56, s37, 7")
    a("s_add_u32 s55, s55, s56")
    a("s_add_u32 s56, s55, 8192")
    a("s_waitcnt lgkmcnt(0)")
    a("s_barrier")
    stamp(a, 3)
    R = 80
    for ps in range(2):
        for wv in range(4):
            for hh in range(2):
                a("ds_read_b128 %s, v6 offset:%d" % (vr(R + 32 * ps + 8 * wv + 4 * hh, 4), wv * WB + ps * 8 * RST + hh * 16))
    a("s_waitcnt vmcnt(0)")
    for ps in range(2):
        g = 12 + ps; b2 = 14 + ps
        a("v_lshlrev_b32 v%d, 16, v%d" % (150 + 6 * ps + 4, b2))
        a("v_sub_f32 v%d, 1.0, v%d" % (150 + 6 * ps, g))
        a("v_cvt_pk_bf16_f32 v%d, v%d, v%d" % (150 + 6 * ps, 150 + 6 * ps, 150 + 6 * ps))
        a("v_lshlrev_b32 v%d, 16, v%d" % (150 + 6 * ps, 150 + 6 * ps))
        a("v_mov_b32 v%d, v%d" % (150 + 6 * ps + 2, g))
    for ps in range(2):
        r = R + 32 * ps; c = 150 + 6 * ps
        a("s_waitcnt lgkmcnt(%d)" % (8 - 8 * ps))
        for k in range(4):
            a("v_pk_add_f32 %s, %s, %s" % (vr(r + 8 + 2 * k, 2), vr(r + 8 + 2 * k, 2), vr(r + 16 + 2 * k, 2)))
        for k in range(4):
            a("v_pk_add_f32 %s, %s, %s op_sel_hi:[1,0]" % (vr(r + 24 + 2 * k, 2), vr(r + 24 + 2 * k, 2), vr(c + 4, 2)))
        for k in range(4):
            a("v_pk_mul_f32 %s, %s, %s op_sel_hi:[1,0]" % (vr(r + 2 * k, 2), vr(r + 2 * k, 2), vr(c + 2, 2)))
        for k in range(4):
            a("v_pk_add_f32 %s, %s, %s" % (vr(r + 8 + 2 * k, 2), vr(r + 8 + 2 * k, 2), vr(r + 24 + 2 * k, 2)))
        for k in range(4):
            a("v_pk_fma_f32 %s, %s, %s, %s op_sel_hi:[1,0,1]" % (vr(r + 2 * k, 2), vr(r + 8 + 2 * k, 2), vr(c, 2), vr(r + 2 * k, 2)))
        for k in range(4): a("v_cvt_pk_bf16_f32 v%d, v%d, v%d" % (r + 16 + k, r + 2 * k, r + 2 * k + 1))
        a("buffer_store_dwordx4 %s, v8, s[44:47], s%d offen" % (vr(r + 16, 4), 55 + ps))
    stamp(a, 4)
    stamp_flush(a, 2, 12)
    a.label("K3_end")
    a("s_endpgm")
    a.label("CODE_END")
    return a.text(), 162

HEADER = open("gated_mix__sliding_block__mixer_token_mlp__prompt.s.ref").read().split("; Override launch")[0]

def build(kernels):
    s = HEADER
    for name, grid, block, lds, _ in kernels:
        s += "; @launch kernel=%s grid=(%d,1,1) block=(%d,1,1) lds=%d\n" % (name, grid, block, lds)
    s += '.amdgcn_target "amdgcn-amd-amdhsa--gfx950"\n.text\n'
    descs = ""
    for name, grid, block, lds, fn in kernels:
        body, vg = fn()
        s += kernel_header(name) + body
        descs += kernel_desc(name, vg)
    s += '.section .rodata,"a"\n' + descs
    if os.environ.get("ALLSC1", "1") == "1":
        out = []
        for l in s.split("\n"):
            if "buffer_store_" in l and "sc1" not in l and "s[84:87]" not in l: l = l.rstrip() + " sc1"
            out.append(l)
        s = "\n".join(out)
    return s

if __name__ == "__main__":
    ks = [("k1_kernel", 256, 512, 2 * K1W, gen_k1), ("k2_kernel", 256, 512, MOFF + 4 * NRM * 4096, gen_k2), ("k3_kernel", 256, 256, 65536 + 69632, gen_k3)]
    LIST = os.environ.get("LIST", "")
    out = sys.argv[1] if len(sys.argv) > 1 else "out.s"
    if len(sys.argv) > 2 and sys.argv[2] == "stamps": STAMPS = True
    txt = build(ks)
    if LIST:
        lines = txt.split("\n")
        ll = [l for l in lines if l.startswith("; @launch")]
        i0 = lines.index(ll[0])
        lines = lines[:i0] + [ll[int(c)] for c in LIST] + lines[i0 + len(ll):]
        txt = "\n".join(lines)
    open(out, "w").write(txt)
```

```python
import sys, struct, os
from asmlib import *

QF = 0
KF = 2 << 20
VF = 4 << 20
HT = 6 << 20
W1O = 9 << 20
GW = 14 << 20
OF = 15 << 20
UF = 17 << 20
WS_USED = 19 << 20
BIG = 0x40000000

STAMPS = False
EXP = set(os.environ.get("EXP", "").split(","))
AUXPOL = os.environ.get("AUXPOL", "")
QKVPOL = os.environ.get("QKVPOL", "")
K2POL = os.environ.get("K2POL", "")
PRIO = os.environ.get("PRIO", "")
TS = 24 << 20
def f32(x): return "0x%08x" % struct.unpack("<I", struct.pack("<f", x))[0]
QSCALE = 0.25 * 1.4426950408889634
GC1 = -2.0 * 0.7978845608028654 * 1.4426950408889634
GC2 = GC1 * 0.044715
NEGBIG = -1.0e30

def stamp(a, n):
    if STAMPS: a("s_memrealtime s[%d:%d]" % (70 + 2 * n, 71 + 2 * n))
def stamp_flush(a, kidx, wsptr, nst=6):
    if not STAMPS: return
    a("s_waitcnt vmcnt(0)")
    stamp(a, nst - 1)
    a("s_memtime s[92:93]")
    a("s_mov_b32 s84, s%d" % wsptr)
    a("s_and_b32 s85, s%d, 0xffff" % (wsptr + 1))
    a("s_mov_b32 s86, 0x%x" % (32 << 20))
    a("s_mov_b32 s87, 0x00020000")
    a("v_lshrrev_b32 v0, 6, v0")
    a("s_lshl_b32 s88, s2, 4")
    a("v_add_u32 v0, s88, v0")
    a("v_lshlrev_b32 v0, 5, v0")
    a("s_waitcnt lgkmcnt(0)")
    a("s_mov_b32 s88, %d" % (TS + (kidx << 20)))
    for i in range(nst):
        a("v_mov_b32 v1, s%d" % (70 + 2 * i))
        a("buffer_store_dword v1, v0, s[84:87], s88 offen offset:%d" % (4 * i))
        a("s_nop 1")
    a("s_sub_u32 s92, s92, s90")
    a("v_mov_b32 v1, s92")
    a("buffer_store_dword v1, v0, s[84:87], s88 offen offset:24")
def stamps_init(a):
    if STAMPS:
        for i in range(1, 5): a("s_mov_b64 s[%d:%d], 0" % (70 + 2 * i, 71 + 2 * i))
        stamp(a, 0)
        a("s_memtime s[90:91]")

def srd(a, d, base, nrec):
    a("s_mov_b32 s%d, s%d" % (d, base))
    a("s_and_b32 s%d, s%d, 0xffff" % (d + 1, base + 1))
    a("s_mov_b32 s%d, %s" % (d + 2, nrec if isinstance(nrec, str) else "0x%x" % nrec))
    a("s_mov_b32 s%d, 0x00020000" % (d + 3))
def srd_off(a, d, base, soff, nrec):
    a("s_add_u32 s%d, s%d, s%d" % (d, base, soff))
    a("s_addc_u32 s%d, s%d, 0" % (d + 1, base + 1))
    a("s_and_b32 s%d, s%d, 0xffff" % (d + 1, d + 1))
    a("s_mov_b32 s%d, %s" % (d + 2, nrec if isinstance(nrec, str) else "0x%x" % nrec))
    a("s_mov_b32 s%d, 0x00020000" % (d + 3))

def code_prefetch(a, tag, start, nchunks, vaddr, vdead):
    if "nocodepf" in EXP: return
    a("s_getpc_b64 s[64:65]")
    a.label("CP_%s" % tag)
    a("s_add_u32 s64, s64, %s-CP_%s" % (start, tag))
    a("s_addc_u32 s65, s65, %s" % ("-1" if tag.endswith("n") else "0"))
    a("v_lshlrev_b32 v%d, 7, v1" % vaddr)
    for c in range(nchunks):
        a("v_min_u32 v%d, CODE_END-%s-4, v%d" % (vaddr + 2, start, vaddr))
        a("global_load_dword v%d, v%d, s[64:65]" % (vdead, vaddr + 2))
        if c + 1 < nchunks: a("v_add_u32 v%d, 8192, v%d" % (vaddr, vaddr))

K1W = 5 * 16384
def gen_k1():
    a = Asm()
    a("s_cmp_ge_u32 s2, 256")
    a("s_cbranch_scc1 K1_end")
    stamps_init(a)
    a("s_load_dwordx4 s[4:7], s[0:1], 0")
    a("s_load_dwordx2 s[8:9], s[0:1], 32")
    a("s_load_dwordx2 s[10:11], s[0:1], 64")
    a("s_load_dwordx2 s[12:13], s[0:1], 88")
    a("v_and_b32 v1, 63, v0")
    a("v_lshrrev_b32 v2, 6, v0")
    a("s_and_b32 s34, s2, 7")
    a("v_readfirstlane_b32 s33, v2")
    a("s_lshr_b32 s35, s2, 3")
    if "scramble" in EXP:
        a("s_add_u32 s34, s34, s35")
        a("s_and_b32 s34, s34, 7")
    a("s_cmp_ge_u32 s35, 24")
    a("s_cbranch_scc1 K1_aux")
    a("s_mul_i32 s36, s35, 43")
    a("s_lshr_b32 s36, s36, 8")
    a("s_mul_i32 s37, s36, 6")
    a("s_sub_u32 s37, s35, s37")
    a("s_lshr_b32 s38, s34, 1")
    a("s_lshl_b32 s38, s38, 2")
    a("s_add_u32 s38, s38, s36")
    a("s_lshr_b32 s39, s37, 1")
    a("s_and_b32 s40, s34, 1")
    a("s_lshl_b32 s40, s40, 1")
    a("s_and_b32 s41, s37, 1")
    a("s_add_u32 s40, s40, s41")
    a("s_cmp_lt_u32 s33, 4")
    a("s_cbranch_scc1 K1_cons")
    a("s_sub_u32 s33, s33, 4")
    a("s_lshl_b32 s41, s39, 9")
    a("s_lshl_b32 s42, s40, 7")
    a("s_add_u32 s41, s41, s42")
    a("s_and_b32 s42, s33, 1")
    a("s_lshl_b32 s42, s42, 2")
    a("v_lshrrev_b32 v3, 4, v1")
    a("v_add_u32 v4, s42, v3")
    a("v_and_b32 v5, 7, v1")
    a("v_xor_b32 v4, v4, v5")
    a("v_lshrrev_b32 v5, 3, v1")
    a("v_lshlrev_b32 v5, 10, v5")
    a("v_lshl_add_u32 v10, v4, 4, v5")
    a("v_lshlrev_b32 v4, 2, v3")
    a("v_and_b32 v5, 15, v1")
    a("v_xor_b32 v4, v4, v5")
    a("v_mul_u32_u24 v5, 3072, v3")
    a("v_lshl_add_u32 v11, v4, 4, v5")
    a("s_lshl_b32 s46, s38, 7")
    a("s_lshl_b32 s44, s33, 3")
    a("s_add_u32 s46, s46, s44")
    a("s_lshl_b32 s46, s46, 10")
    a("s_mul_i32 s47, s33, 12288")
    a("s_lshl_b32 s45, s41, 1")
    a("s_add_u32 s47, s47, s45")
    a("s_lshl_b32 s48, s33, 10")
    if "norot1" in EXP:
        a("s_mov_b32 s57, 0")
    else:
        a("s_lshl_b32 s57, s36, 1")
        a("s_add_u32 s57, s57, s37")
        a("s_and_b32 s57, s57, 7")
    a("s_waitcnt lgkmcnt(0)")
    srd(a, 16, 4, 2048 * 1024)
    srd(a, 20, 6, 512 * 3072)
    stamp(a, 1)
    def issue():
        a("s_lshl_b32 s58, s57, 7")
        a("s_add_u32 s58, s58, s46")
        a("s_mul_i32 s59, s57, 196608")
        a("s_add_u32 s59, s59, s47")
        for u in range(4):
            a("s_add_u32 m0, s48, %d" % (u * 4096))
            a("s_add_u32 s50, s58, %d" % (u * 32768))
            a("buffer_load_dwordx4 v10, s[16:19], s50 offen lds")
            a("s_add_u32 m0, s48, %d" % (K1W + u * 4096))
            a("s_add_u32 s50, s59, %d" % (u * 49152))
            a("buffer_load_dwordx4 v11, s[20:23], s50 offen lds")
        a("s_add_u32 s57, s57, 1")
        a("s_and_b32 s57, s57, 7")
        a("s_add_u32 s48, s48, 16384")
        a("s_cmp_ge_u32 s48, %d" % K1W)
        a("s_cselect_b32 s48, s60, s48")
    a("s_mov_b32 s49, 0")
    a("s_mov_b32 s60, s48")
    a.label("K1_ld")
    issue()
    a("s_add_u32 s49, s49, 1")
    a("s_cmp_lt_u32 s49, 3")
    a("s_cbranch_scc1 K1_ld")
    a("s_cmp_eq_u32 s49, 4")
    a("s_cbranch_scc1 K1_ld")
    a("s_cmp_eq_u32 s49, 5")
    a("s_cbranch_scc0 K1_ld2")
    a("s_waitcnt vmcnt(24)")
    a("s_barrier")
    a.label("K1_ld2")
    a("s_waitcnt vmcnt(16)")
    a("s_barrier")
    a("s_cmp_lt_u32 s49, 8")
    a("s_cbranch_scc1 K1_ld")
    stamp(a, 3)
    a("s_waitcnt vmcnt(8)")
    a("s_barrier")
    a("s_waitcnt vmcnt(0)")
    a("s_barrier")
    if "now1pf" not in EXP and "ldtouch" in EXP:
        a("s_mul_i32 s38, s34, 640")
        a("s_sub_u32 s39, s34, 4")
        a("s_mul_i32 s39, s39, 768")
        a("s_cmp_lt_u32 s34, 4")
        a("s_cselect_b32 s38, s38, s39")
        a("s_movk_i32 s39, 640")
        a("s_cselect_b32 s39, 512, s39")
        a("s_cmp_eq_u32 s34, 7")
        a("s_cselect_b32 s39, 384, s39")
        a("v_and_b32 v12, 7, v1")
        a("v_lshlrev_b32 v12, 7, v12")
        a("v_min_u32 v12, s39, v12")
        a("v_lshrrev_b32 v13, 3, v1")
        a("v_mul_u32_u24 v13, 5504, v13")
        a("v_add_u32 v12, v12, v13")
        a("s_lshl_b32 s40, s35, 2")
        a("s_add_u32 s40, s40, s33")
        a("s_mul_i32 s41, s40, %d" % (8 * 5504))
        a("s_add_u32 s38, s38, s41")
        srd(a, 20, 8, 2048 * 2752)
        a("buffer_load_dword v14, v12, s[20:23], s38 offen")
        a("s_cmp_lt_u32 s40, 32")
        a("s_cbranch_scc0 K1_ldx")
        a("s_add_u32 s38, s38, %d" % (96 * 8 * 5504))
        a("buffer_load_dword v15, v12, s[20:23], s38 offen")
        a.label("K1_ldx")
    stamp_flush(a, 0, 12)
    a("s_endpgm")
    a.label("K1_cons")
    a("s_cmp_eq_u32 s33, 3")
    a("s_cbranch_scc0 K1_ncp")
    code_prefetch(a, "k1n", "k1_kernel", 3, 28, 29)
    a.label("K1_ncp")
    a("s_lshr_b32 s51, s33, 1")
    a("s_and_b32 s52, s33, 1")
    a("v_bfe_u32 v3, v1, 1, 3")
    a("v_lshrrev_b32 v4, 5, v1")
    a("v_xor_b32 v5, v3, v4")
    a("v_and_b32 v6, 31, v1")
    a("s_lshl_b32 s53, s51, 13")
    a("v_lshl_add_u32 v6, v6, 7, s53")
    for ks in range(4):
        a("v_xor_b32 v7, %d, v5" % (2 * ks))
        a("v_lshl_add_u32 v%d, v7, 4, v6" % (12 + ks))
    a("v_bfe_u32 v3, v1, 2, 2")
    a("v_lshl_add_u32 v5, v4, 3, v3")
    a("v_lshlrev_b32 v5, 8, v5")
    a("s_lshl_b32 s53, s52, 1")
    a("v_xor_b32 v6, s53, v3")
    a("v_lshl_add_u32 v5, v6, 6, v5")
    a("v_bfe_u32 v6, v1, 4, 1")
    a("v_lshl_add_u32 v5, v6, 5, v5")
    a("v_and_b32 v6, 3, v1")
    a("v_lshl_add_u32 v5, v6, 3, v5")
    a("v_add_u32 v16, %d, v5" % K1W)
    a("v_xor_b32 v17, 64, v16")
    for i in range(6): a("v_mov_b32 v%d, v%d" % (20 + i, 12 + i))
    ACC = 96
    for i in range(0, 64, 2): a("v_mov_b64 %s, 0" % vr(ACC + i, 2))
    XFR = 32
    def reads(ks, b):
        r = []
        if "k1noread" in EXP: return ["s_nop 0"]
        for t in range(2):
            r.append("ds_read_b128 %s, v%d offset:%d" % (vr(XFR + b * 16 + t * 4, 4), 20 + ks, t * 4096))
        for mt in range(2):
            for rd in range(2):
                r.append("ds_read_b64_tr_b16 %s, v%d offset:%d" % (vr(XFR + b * 16 + 8 + mt * 4 + rd * 2, 2), 24 + mt, ks * 4096 + rd * 1024))
        return r
    def mfmas(b, vtype):
        r = []
        if "k1nomfma" in EXP: return ["s_nop 0"]
        for i in range(2):
            for j in range(2):
                acc = vr(ACC + (i * 2 + j) * 16, 16)
                xf = lambda t: vr(XFR + b * 16 + t * 4, 4)
                wf = lambda t: vr(XFR + b * 16 + 8 + t * 4, 4)
                if vtype: r.append("v_mfma_f32_32x32x16_bf16 %s, %s, %s, %s" % (acc, xf(i), wf(j), acc))
                else: r.append("v_mfma_f32_32x32x16_bf16 %s, %s, %s, %s" % (acc, wf(i), xf(j), acc))
        return r
    a("s_lshl_b32 s53, s40, 3")
    a("s_lshl_b32 s54, s52, 2")
    a("s_add_u32 s53, s53, s54")
    a("s_lshl_b32 s53, s53, 16")
    a("s_lshl_b32 s54, s38, 2")
    a("s_lshl_b32 s55, s51, 1")
    a("s_add_u32 s54, s54, s55")
    a("s_lshl_b32 s54, s54, 10")
    a("s_add_u32 s53, s53, s54")
    a("s_lshl_b32 s54, s39, 21")
    a("s_add_u32 s53, s53, s54")
    a("s_cmp_eq_u32 s39, 0")
    a("s_cselect_b32 s56, %s, 1.0" % f32(QSCALE))
    a("s_mov_b32 s49, 0")
    a("s_mov_b32 s54, 0")
    a("s_waitcnt lgkmcnt(0)")
    srd(a, 24, 12, WS_USED)
    stamp(a, 1)
    a("s_barrier")
    stamp(a, 2)
    for r in reads(0, 0): a(r)
    for r in reads(1, 1): a(r)
    a("s_cmp_eq_u32 s39, 2")
    a("s_cbranch_scc1 K1_loop_v")
    for vtype in (0, 1):
        L = "K1_loop_v" if vtype else "K1_loop_qk"
        a.label(L)
        for ks in range(4):
            if ks == 2:
                a("s_add_u32 s54, s54, 16384")
                a("s_cmp_ge_u32 s54, %d" % K1W)
                a("s_cselect_b32 s54, 0, s54")
                for i in range(6): a("v_add_u32 v%d, s54, v%d" % (20 + i, 12 + i))
                a("s_cmp_eq_u32 s49, 7")
                a("s_cbranch_scc1 %s_nb" % L)
                a("s_barrier")
                a.label(L + "_nb")
            a("s_waitcnt lgkmcnt(6)")
            rd = reads((ks + 2) % 4, (ks + 2) % 4)
            mf = mfmas(ks, vtype)
            for n in range(len(mf)):
                a(mf[n])
                for r in rd[2 * n:2 * n + 2]: a(r)
        a("s_add_u32 s49, s49, 1")
        a("s_cmp_lt_u32 s49, 8")
        a("s_cbranch_scc1 %s" % L)
        a("s_waitcnt lgkmcnt(0)")
        stamp(a, 3)
        if not vtype:
            a("v_lshlrev_b32 v3, 4, v1")
        else:
            a("v_bfe_u32 v3, v1, 4, 1")
            a("v_lshlrev_b32 v3, 16, v3")
            a("v_lshrrev_b32 v4, 5, v1")
            a("v_lshl_add_u32 v3, v4, 8, v3")
            a("v_and_b32 v4, 15, v1")
            a("v_lshl_add_u32 v3, v4, 4, v3")
        a("s_nop 7")
        for i in range(2):
            for j in range(2):
                base = ACC + (i * 2 + j) * 16
                if i == 1 and j == 1: a("s_nop 3")
                for half in range(2):
                    t = 32 + ((i * 4 + j * 2 + half) % 4) * 4
                    for k in range(4):
                        r0 = base + half * 8 + 2 * k
                        if not vtype:
                            a("v_pk_mul_f32 %s, %s, s[56:57] op_sel_hi:[1,0]" % (vr(r0, 2), vr(r0, 2)))
                        a("v_cvt_pk_bf16_f32 v%d, v%d, v%d" % (t + k, r0, r0 + 1))
                    if not vtype:
                        a("s_add_u32 s54, s53, %d" % ((2 * i + half) * 65536))
                        a("buffer_store_dwordx4 %s, v3, s[24:27], s54 offen offset:%d %s" % (vr(t, 4), j * 1024, QKVPOL))
                    else:
                        a("s_add_u32 s54, s53, %d" % (2 * j * 65536))
                        a("buffer_store_dwordx4 %s, v3, s[24:27], s54 offen offset:%d %s" % (vr(t, 4), i * 1024 + half * 512, QKVPOL))
        stamp_flush(a, 0, 12)
        a("s_endpgm")
    a.label("K1_aux")
    RS = 1040
    a("s_sub_u32 s36, s35, 24")
    a("s_lshl_b32 s37, s34, 3")
    a("s_add_u32 s36, s36, s37")
    a("v_lshrrev_b32 v3, 4, v1")
    a("v_and_b32 v4, 15, v1")
    a("v_lshlrev_b32 v5, 4, v4")
    a("v_lshl_add_u32 v6, v3, 10, v5")
    a("v_lshlrev_b32 v7, 4, v1")
    a("s_lshl_b32 s37, s36, 15")
    a("s_lshl_b32 s38, s33, 12")
    a("s_add_u32 s37, s37, s38")
    a("s_waitcnt lgkmcnt(0)")
    srd(a, 16, 4, 2048 * 1024)
    srd(a, 28, 10, 1024)
    XR = 32; GR = 48; D0 = 64; CP = 96
    for t in range(4):
        a("buffer_load_dwordx4 %s, v6, s[16:19], s37 offen offset:%d" % (vr(XR + 4 * t, 4), t * 256))
    for t in range(4):
        a("buffer_load_dwordx4 %s, v5, s[28:31], 0 offen offset:%d" % (vr(GR + 4 * t, 4), t * 256))
    stamp(a, 1)
    srd(a, 20, 8, 2048 * 2752)
    srd(a, 24, 12, WS_USED)
    a("s_lshl_b32 s43, s36, 4")
    a("s_lshl_b32 s44, s33, 1")
    a("s_add_u32 s43, s43, s44")
    a("s_mul_i32 s44, s43, 5504")
    a("s_add_u32 s44, s44, 2752")
    a("s_add_u32 s45, s44, 5504")
    a("s_lshl_b32 s46, s43, 7")
    a("s_add_u32 s46, s46, %d" % W1O)
    a("v_lshrrev_b32 v31, 3, v1")
    a("v_lshlrev_b32 v31, 17, v31")
    a("v_and_b32 v27, 7, v1")
    a("v_lshl_add_u32 v31, v27, 4, v31")
    a("s_mul_i32 s38, s34, 640")
    a("s_sub_u32 s39, s34, 4")
    a("s_mul_i32 s39, s39, 768")
    a("s_cmp_lt_u32 s34, 4")
    a("s_cselect_b32 s38, s38, s39")
    a("s_movk_i32 s39, 640")
    a("s_cselect_b32 s39, 512, s39")
    a("s_cmp_eq_u32 s34, 7")
    a("s_cselect_b32 s39, 384, s39")
    a("v_and_b32 v28, 7, v1")
    a("v_lshlrev_b32 v28, 7, v28")
    a("v_min_u32 v28, s39, v28")
    a("v_lshrrev_b32 v9, 3, v1")
    a("v_mul_u32_u24 v9, 5504, v9")
    a("v_add_u32 v28, v28, v9")
    a("s_sub_u32 s40, s35, 24")
    a("s_lshl_b32 s40, s40, 3")
    a("s_add_u32 s40, s40, s33")
    a("s_mul_i32 s40, s40, %d" % (8 * 5504))
    a("s_add_u32 s38, s38, s40")
    a("v_bfe_u32 v29, v1, 2, 2")
    a("v_lshl_add_u32 v29, v3, 2, v29")
    a("v_and_b32 v30, 3, v1")
    a("v_lshlrev_b32 v30, 3, v30")
    a("v_mul_u32_u24 v29, %d, v29" % (2 * RS))
    a("v_add_u32 v29, v29, v30")
    a("s_lshl_b32 s41, s33, 7")
    a("v_add_u32 v29, s41, v29")
    a("s_mul_i32 s40, s36, 3072")
    a("s_add_u32 s40, s40, %d" % HT)
    for d in range(4):
        a("s_lshl_b32 s41, s33, 2")
        a("s_add_u32 s41, s41, %d" % d)
        a("s_cmp_ge_u32 s41, 30")
        a("s_addc_u32 s41, s41, 0")
        a("s_mul_i32 s42, s41, 43")
        a("s_lshr_b32 s42, s42, 7")
        a("s_mul_i32 s50, s42, 3")
        a("s_sub_u32 s41, s41, s50")
        a("s_lshl_b32 s41, s41, 10")
        a("s_mul_i32 s42, s42, 196608")
        a("s_add_u32 s41, s41, s42")
        a("s_add_u32 s%d, s41, s40" % (52 + d))
    a("s_lshl_b32 s42, s36, 7")
    a("s_lshl_b32 s41, s33, 4")
    a("s_add_u32 s42, s42, s41")
    a("s_add_u32 s42, s42, %d" % GW)
    a("s_lshl_b32 s41, s33, 2")
    a("v_add_u32 v9, s41, v3")
    a("v_mul_u32_u24 v9, %d, v9" % RS)
    a("v_add_u32 v9, v9, v5")
    a("v_lshlrev_b32 v30, 2, v3")
    a("v_mov_b32 v8, 0x3f803f80")
    a("v_mov_b64 v[10:11], 0")
    a("v_mov_b64 v[12:13], 0")
    def w1loads():
        for r in range(2):
            for t in range(3):
                a("buffer_load_dwordx4 %s, v7, s[20:23], s%d offen offset:%d" % (vr(CP + 12 * r + 4 * t, 4), 44 + r, t * 1024))
    NT = 0 if ("now1pf" in EXP or "endtouch" in EXP) else 2
    def touches(n=NT):
        if n and "endtouch" not in EXP: a("s_barrier")
        for t in range(n):
            a("buffer_load_dword v%d, v28, s[20:23], s38 offen" % (24 + t))
            a("s_add_u32 s38, s38, %d" % (512 * 5504))
    if "w1late" not in EXP:
        w1loads(); touches()
    a("s_waitcnt vmcnt(%d)" % (6 + NT if "w1late" not in EXP else 0))
    stamp(a, 2)
    if "w1late" in EXP:
        w1loads(); touches()
    for i in range(16):
        a("v_dot2c_f32_bf16 v%d, v%d, v8" % (10 + (i & 1), XR + i))
        a("v_dot2c_f32_bf16 v%d, v%d, v%d" % (12 + (i & 1), XR + i, GR + i))
    for i in range(16):
        a("v_lshlrev_b32 v%d, 16, v%d" % (D0 + 2 * i, XR + i))
        a("v_and_b32 v%d, 0xffff0000, v%d" % (D0 + 2 * i + 1, XR + i))
    a("v_add_f32 v10, v10, v11")
    a("v_add_f32 v12, v12, v13")
    def red(regs):
        for pat in ("quad_perm:[1,0,3,2]", "quad_perm:[2,3,0,1]", "row_half_mirror", "row_mirror"):
            a("s_nop 1")
            for r in regs:
                a("v_add_f32_dpp v%d, v%d, v%d %s row_mask:0xf bank_mask:0xf" % (r, r, r, pat))
    red([10, 12])
    a("v_mul_f32 v14, %s, v10" % f32(1.0 / 512))
    a("v_mov_b64 v[16:17], 0")
    a("v_mov_b64 v[18:19], 0")
    for i in range(16):
        p = vr(D0 + 2 * i, 2)
        a("v_pk_add_f32 %s, %s, v[14:15] op_sel_hi:[1,0] neg_lo:[0,1] neg_hi:[0,1]" % (p, p))
    for i in range(16):
        p = vr(D0 + 2 * i, 2); ac = vr(16 + 2 * (i & 1), 2)
        a("v_pk_fma_f32 %s, %s, %s, %s" % (ac, p, p, ac))
    a("v_add_f32 v16, v16, v17")
    a("v_add_f32 v18, v18, v19")
    a("v_add_f32 v16, v16, v18")
    red([16])
    a("v_mul_f32 v16, %s, v16" % f32(1.0 / 512))
    a("v_cvt_pk_bf16_f32 v16, v16, v14")
    a("v_cvt_pk_bf16_f32 v12, v12, v12")
    a("v_and_b32 v17, 0xffff0000, v16")
    a("v_lshlrev_b32 v16, 16, v16")
    a("v_lshlrev_b32 v12, 16, v12")
    a("v_add_f32 v16, %s, v16" % f32(1e-5))
    a("v_mul_f32 v12, %s, v12" % f32(-1.4426950408889634))
    a("v_cvt_pk_bf16_f32 v16, v16, v16")
    a("v_exp_f32 v12, v12")
    a("v_lshlrev_b32 v16, 16, v16")
    a("v_sqrt_f32 v16, v16")
    a("v_add_f32 v12, 1.0, v12")
    a("v_cvt_pk_bf16_f32 v16, v16, v16")
    a("v_rcp_f32 v12, v12")
    a("v_lshlrev_b32 v16, 16, v16")
    a("v_rcp_f32 v20, v16")
    a("v_sub_f32 v18, v14, v17")
    a("v_cvt_pk_bf16_f32 v12, v12, v12")
    a("v_mul_f32 v22, v18, v20")
    a("v_lshlrev_b32 v12, 16, v12")
    for t in range(4):
        for k in range(4):
            p = vr(D0 + 2 * (4 * t + k), 2)
            a("v_pk_fma_f32 %s, %s, v[20:21], v[22:23] op_sel_hi:[1,0,0]" % (p, p))
        for k in range(4):
            i = 4 * t + k
            a("v_cvt_pk_bf16_f32 v%d, v%d, v%d" % (XR + i, D0 + 2 * i, D0 + 2 * i + 1))
        a("ds_write_b128 v9, %s offset:%d" % (vr(XR + 4 * t, 4), t * 256))
    a("buffer_store_dword v12, v30, s[24:27], s42 offen")
    a("s_waitcnt lgkmcnt(0)")
    stamp(a, 3)
    a("s_barrier")
    for d in range(4):
        for rd in range(2):
            a("ds_read_b64_tr_b16 %s, v29 offset:%d" % (vr(32 + 4 * d + 2 * rd, 2), 32 * d + rd * RS))
    for d in range(4):
        a("s_waitcnt lgkmcnt(%d)" % (6 - 2 * d))
        a("buffer_store_dwordx4 %s, v7, s[24:27], s%d offen %s" % (vr(32 + 4 * d, 4), 52 + d, AUXPOL))
    a("s_waitcnt vmcnt(%d)" % (NT + 5))
    a("s_cmp_eq_u32 s33, 7")
    a("s_cbranch_scc0 K1_nx")
    a("s_add_u32 s41, s40, %d" % (10 * 196608))
    a("buffer_store_dwordx4 v[36:39], v7, s[24:27], s41 offen %s" % AUXPOL)
    a.label("K1_nx")
    a("s_mov_b32 s48, -1")
    a("s_mov_b32 s49, 0xffff")
    stamp(a, 4)
    for r in range(2):
        for t in range(3):
            if t == 2: a("s_mov_b64 exec, s[48:49]")
            a("s_add_u32 s47, s46, %d" % (t * 8 * 131072))
            a("buffer_store_dwordx4 %s, v31, s[24:27], s47 offen offset:%d %s" % (vr(CP + 12 * r + 4 * t, 4), r * 128, AUXPOL))
            if t == 2: a("s_mov_b64 exec, -1")
    if "endtouch" in EXP: touches(2)
    stamp_flush(a, 0, 12)
    a.label("K1_end")
    a("s_endpgm")
    return a.text(), 160

NRM = 6; MOFF = 33792; CNT = 33280
def lds_sync(a, idx, name, vt):
    a("v_mov_b32 v%d, %d" % (vt, CNT + 4 * idx))
    a("v_mov_b32 v%d, 1" % (vt + 1))
    a("s_mov_b64 exec, 1")
    a("ds_add_u32 v%d, v%d" % (vt, vt + 1))
    a("s_mov_b64 exec, -1")
    a.label(name)
    a("ds_read_b32 v%d, v%d" % (vt + 1, vt))
    a("s_waitcnt lgkmcnt(0)")
    a("v_readfirstlane_b32 s68, v%d" % (vt + 1))
    a("s_cmp_ge_u32 s68, 4")
    a("s_cbranch_scc0 %s" % name)
def gen_k2():
    a = Asm()
    a("s_cmp_ge_u32 s2, 256")
    a("s_cbranch_scc1 K2_end")
    stamps_init(a)
    a("s_load_dwordx4 s[8:11], s[0:1], 32")
    a("s_load_dwordx2 s[12:13], s[0:1], 88")
    a("s_load_dwordx2 s[4:5], s[0:1], 16")
    a("s_load_dwordx2 s[6:7], s[0:1], 48")
    a("v_and_b32 v1, 63, v0")
    a("v_lshrrev_b32 v2, 6, v0")
    a("s_and_b32 s34, s2, 7")
    a("v_readfirstlane_b32 s33, v2")
    a("s_lshr_b32 s35, s2, 3")
    if "scramble" in EXP:
        a("s_add_u32 s34, s34, s35")
        a("s_and_b32 s34, s34, 7")
    a("v_lshlrev_b32 v2, 4, v1")
    a("v_mov_b32 v3, %d" % CNT)
    a("v_mov_b64 v[4:5], 0")
    a("ds_write_b64 v3, v[4:5]")
    a("ds_write_b64 v3, v[4:5] offset:8")
    a("s_waitcnt lgkmcnt(0)")
    a("s_barrier")
    if "swaprole" in EXP:
        a("s_xor_b32 s33, s33, 4")
    a("s_cmp_lt_u32 s33, 4")
    a("s_cbranch_scc1 K2_attn")
    a("s_sub_u32 s33, s33, 4")
    a("s_cmp_eq_u32 s34, 7")
    a("s_cbranch_scc1 K2_d7")
    a("s_cmp_ge_u32 s35, 30")
    a("s_cbranch_scc1 K2_pref")
    a("s_cmp_lt_u32 s34, 4")
    a("s_cbranch_scc0 K2_d5")
    a("s_mul_i32 s36, s34, 5")
    a("s_mov_b32 s37, s35")
    a.label("K2_d6")
    a("s_mul_i32 s38, s37, 43")
    a("s_lshr_b32 s38, s38, 8")
    a("s_mul_i32 s39, s38, 6")
    a("s_sub_u32 s39, s37, s39")
    a("s_add_u32 s38, s38, s36")
    a("s_branch K2_dd")
    a.label("K2_d7")
    a("s_mov_b32 s36, 20")
    a("s_sub_u32 s37, s35, 20")
    a("s_cmp_ge_u32 s35, 20")
    a("s_cbranch_scc1 K2_d6")
    a.label("K2_d5")
    a("s_sub_u32 s36, s34, 4")
    a("s_mul_i32 s36, s36, 6")
    a("s_mul_i32 s38, s35, 52")
    a("s_lshr_b32 s38, s38, 8")
    a("s_mul_i32 s39, s38, 5")
    a("s_sub_u32 s39, s35, s39")
    a("s_add_u32 s39, s39, 6")
    a("s_add_u32 s38, s38, s36")
    a.label("K2_dd")

    a("v_lshrrev_b32 v3, 3, v1")
    a("v_lshlrev_b32 v153, 7, v3")
    a("v_mul_u32_u24 v3, 5504, v3")
    a("v_lshrrev_b32 v4, 4, v1")
    a("v_lshlrev_b32 v4, 1, v4")
    a("v_and_b32 v5, 7, v1")
    a("v_xor_b32 v4, v4, v5")
    a("v_lshl_add_u32 v3, v4, 4, v3")
    a("v_lshl_add_u32 v153, v4, 4, v153")
    a("s_mul_i32 s54, s33, %d" % (256 * 5504))
    a("s_lshl_b32 s40, s38, 7")
    a("s_add_u32 s54, s54, s40")
    a("s_lshl_b32 s53, s33, 15")
    a("s_lshl_b32 s40, s38, 17")
    a("s_add_u32 s53, s53, s40")
    a("s_add_u32 s53, s53, %d" % W1O)
    a("s_mul_i32 s55, s33, %d" % (16 * 3072))
    a("s_mul_i32 s40, s39, 196608")
    a("s_add_u32 s55, s55, s40")
    a("s_add_u32 s55, s55, %d" % HT)
    a("s_mul_i32 s40, s33, %d" % (NRM * 4096))
    a("s_add_u32 s40, s40, %d" % MOFF)
    a("s_waitcnt lgkmcnt(0)")
    srd(a, 16, 8, 2048 * 2752)
    srd(a, 24, 12, WS_USED)
    ACC = 8; AF = 56; BF = 160
    def loads(b):
        r = []
        for q in range(4):
            r.append("s_add_u32 m0, s40, %d" % (b * 4096 + q * 1024))
            if q < 2:
                r.append("s_add_u32 s50, s54, %d" % (q * 8 * 5504))
                r.append("buffer_load_dwordx4 v3, s[16:19], s50 offen lds")
            else:
                r.append("s_add_u32 s50, s53, %d" % ((q - 2) * 1024))
                r.append("buffer_load_dwordx4 v153, s[24:27], s50 offen lds")
        for i in range(3):
            r.append("buffer_load_dwordx4 %s, v2, s[24:27], s55 offen offset:%d" % (vr(BF + 12 * b + 4 * i, 4), i * 1024))
        r.append("s_add_u32 s54, s54, %d" % (16 * 5504))
        r.append("s_add_u32 s53, s53, 2048")
        r.append("s_add_u32 s55, s55, 3072")
        return r
    def trreads(b):
        return ["ds_read_b64_tr_b16 %s, v%d offset:%d" % (vr(AF + 16 * (b & 1) + 4 * e + 2 * rd, 2), 140 + e, b * 4096 + rd * 2048) for e in range(4) for rd in range(2)]
    for b in range(NRM - 1):
        for l in loads(b): a(l)
    stamp(a, 1)
    srd(a, 28, 10, 2752)
    a("v_bfe_u32 v4, v1, 2, 2")
    a("v_lshrrev_b32 v5, 4, v1")
    a("v_lshl_add_u32 v4, v5, 2, v4")
    a("v_bfe_u32 v5, v4, 1, 2")
    a("v_lshlrev_b32 v5, 5, v5")
    a("v_lshl_add_u32 v5, v4, 7, v5")
    a("v_and_b32 v4, 3, v1")
    a("v_lshl_add_u32 v5, v4, 3, v5")
    a("v_add_u32 v140, s40, v5")
    for e in range(1, 4): a("v_xor_b32 v%d, %d, v140" % (140 + e, e << 5))
    for i in range(0, 48, 2): a("v_mov_b64 %s, 0" % vr(ACC + i, 2))
    a("v_lshrrev_b32 v4, 4, v1")
    a("v_lshlrev_b32 v5, 3, v4")
    a("s_lshl_b32 s44, s38, 7")
    a("s_lshl_b32 s45, s33, 5")
    a("s_add_u32 s44, s44, s45")
    a("buffer_load_dwordx2 v[146:147], v5, s[28:31], s44 offen")
    a("v_and_b32 v6, 15, v1")
    a("v_mul_u32_u24 v144, 272, v6")
    a("v_lshl_add_u32 v145, v4, 4, v144")
    a("s_lshl_b32 s45, s33, 6")
    a("v_add_u32 v145, s45, v145")
    a("v_lshl_add_u32 v144, v4, 4, v144")
    a("s_mul_i32 s45, s33, 13056")
    a("s_add_u32 s45, s45, %d" % MOFF)
    a("v_add_u32 v144, s45, v144")
    a("v_add_u32 v145, %d, v145" % MOFF)
    a("s_mul_i32 s45, s39, 48")
    a("s_min_u32 s45, s45, 464")
    a("v_add_u32 v6, s45, v6")
    a("v_lshrrev_b32 v7, 5, v1")
    a("v_bfe_u32 v5, v1, 4, 1")
    a("v_lshlrev_b32 v5, 3, v5")
    a("v_lshl_add_u32 v5, v7, 9, v5")
    a("s_mov_b32 s45, 176128")
    for dt in range(3):
        a("v_add_u32 v7, %d, v6" % (16 * dt))
        a("v_lshrrev_b32 v148, 6, v7")
        a("v_mul_lo_u32 v148, v148, s45")
        a("v_bfe_u32 v149, v7, 5, 1")
        a("v_lshl_add_u32 v148, v149, 10, v148")
        a("v_and_b32 v149, 31, v7")
        a("v_lshl_add_u32 v148, v149, 4, v148")
        a("v_add_u32 v%d, v148, v5" % (150 + dt))
    a("s_lshl_b32 s47, s38, 2")
    a("s_add_u32 s47, s47, s33")
    a("s_lshl_b32 s46, s47, 11")
    a("s_add_u32 s46, s46, %d" % UF)
    a("s_mov_b32 s48, %s" % f32(GC2))
    a("s_mov_b32 s49, %s" % f32(GC1))
    a("s_mov_b32 s44, 0")
    a("s_waitcnt vmcnt(%d)" % (7 * (NRM - 2) + 1))
    if PRIO: a("s_setprio %s" % PRIO)
    for r in trreads(0): a(r)
    def step(b, ld, wait, tr=True, skip=None):
        mf = []
        for ai in range(4):
            for bi in range(3):
                acc = vr(ACC + (ai * 3 + bi) * 4, 4)
                mf.append("v_mfma_f32_16x16x32_bf16 %s, %s, %s, %s" % (acc, vr(AF + 16 * (b & 1) + 4 * ai, 4), vr(BF + 12 * b + 4 * bi, 4), acc))
        if "ldfirst" in EXP:
            if skip:
                a("s_cmp_eq_u32 s44, 1")
                a("s_cbranch_scc1 %s" % skip)
            for l in ld: a(l)
            if ld and not skip: a("s_waitcnt vmcnt(%d)" % (wait + 7))
            elif skip:
                a("s_waitcnt vmcnt(%d)" % (wait + 7))
                a.label(skip)
                a("s_waitcnt vmcnt(%d)" % (wait + 7)) if False else None
                a("s_nop 0")
            if tr:
                if not ld: a("s_waitcnt vmcnt(%d)" % wait)
                if skip:
                    a("s_cmp_eq_u32 s44, 1")
                    a("s_cbranch_scc0 %s_b" % skip)
                    a("s_waitcnt vmcnt(%d)" % wait)
                    a.label(skip + "_b")
                for r in trreads((b + 1) % NRM): a(r)
                a("s_waitcnt lgkmcnt(8)")
            else:
                a("s_waitcnt lgkmcnt(0)")
            for m in mf: a(m)
            return
        if tr:
            a("s_waitcnt vmcnt(%d)" % wait)
            for r in trreads((b + 1) % NRM): a(r)
            a("s_waitcnt lgkmcnt(8)")
        else:
            a("s_waitcnt lgkmcnt(0)")
        if skip:
            for m in mf[:4]: a(m)
            a("s_cmp_eq_u32 s44, 1")
            a("s_cbranch_scc1 %s" % skip)
            for l in ld: a(l)
            a.label(skip)
            for m in mf[4:]: a(m)
            return
        n = 0
        for m in mf:
            a(m)
            for _ in range(2):
                if n < len(ld): a(ld[n]); n += 1
    W = 7 * (NRM - 3)
    a.label("K2_mloop")
    for b in range(NRM): step(b, loads((b + NRM - 1) % NRM), W, skip="K2_msk" if b == NRM - 1 else None)
    a("s_add_u32 s44, s44, 1")
    a("s_cmp_lt_u32 s44, 2")
    a("s_cbranch_scc1 K2_mloop")
    step(0, [], 14)
    step(1, [], 7)
    step(2, [], 0)
    step(3, [], 0, tr=False)
    stamp(a, 2)
    if "nopref" not in EXP and "notailpf" not in EXP:
        a("s_mul_i32 s44, s38, 11")
        a("s_add_u32 s44, s44, s39")
        a("s_mul_i32 s45, s33, 242")
        a("s_add_u32 s44, s44, s45")
        a("s_cmp_lt_u32 s44, %d" % (3 * (232 - PFSPLIT)))
        a("s_cbranch_scc0 K2_np")
        a("s_mul_i32 s45, s44, 683")
        a("s_lshr_b32 s45, s45, 11")
        a("s_mul_i32 s50, s45, 3")
        a("s_sub_u32 s50, s44, s50")
        a("s_mul_i32 s50, s50, 232")
        a("s_add_u32 s50, s50, s45")
        a("s_add_u32 s50, s50, %d" % PFSPLIT)
        a("s_lshl_b32 s50, s50, 13")
        srd(a, 16, 6, 1376 * 4096)
        a("v_lshlrev_b32 v154, 7, v1")
        a("buffer_load_dword v155, v154, s[16:19], s50 offen")
        a.label("K2_np")
    lds_sync(a, 1, "K2_sy1", 4)
    for ai in range(4):
        for bi in range(3):
            a("ds_write_b128 v144, %s offset:%d" % (vr(ACC + (ai * 3 + bi) * 4, 4), bi * 16 * 272 + ai * 64))
    for j in range(2):
        a("v_lshlrev_b32 v%d, 16, v%d" % (136 + 2 * j, 146 + j))
        a("v_and_b32 v%d, 0xffff0000, v%d" % (137 + 2 * j, 146 + j))
    a("s_waitcnt lgkmcnt(0)")
    lds_sync(a, 2, "K2_sy2", 4)
    a("s_cmp_ge_u32 s47, 86")
    a("s_cbranch_scc1 K2_mdone")
    R = 56
    for k in range(3):
        for wv in range(4):
            a("ds_read_b128 %s, v145 offset:%d" % (vr(R + 16 * k + 4 * wv, 4), wv * 13056 + k * 16 * 272))
    for k in range(3):
        r = R + 16 * k
        a("s_waitcnt lgkmcnt(%d)" % (8 - 4 * k))
        a("v_pk_add_f32 %s, %s, %s" % (vr(r, 2), vr(r, 2), vr(r + 4, 2)))
        a("v_pk_add_f32 %s, %s, %s" % (vr(r + 2, 2), vr(r + 2, 2), vr(r + 6, 2)))
        a("v_pk_add_f32 %s, %s, %s" % (vr(r + 8, 2), vr(r + 8, 2), vr(r + 12, 2)))
        a("v_pk_add_f32 %s, %s, %s" % (vr(r + 10, 2), vr(r + 10, 2), vr(r + 14, 2)))
        a("v_pk_add_f32 %s, %s, %s" % (vr(r, 2), vr(r, 2), vr(136, 2)))
        a("v_pk_add_f32 %s, %s, %s" % (vr(r + 2, 2), vr(r + 2, 2), vr(138, 2)))
        a("v_pk_add_f32 %s, %s, %s" % (vr(r, 2), vr(r, 2), vr(r + 8, 2)))
        a("v_pk_add_f32 %s, %s, %s" % (vr(r + 2, 2), vr(r + 2, 2), vr(r + 10, 2)))
        a("v_pk_mul_f32 %s, %s, %s" % (vr(r + 8, 2), vr(r, 2), vr(r, 2)))
        a("v_pk_mul_f32 %s, %s, %s" % (vr(r + 10, 2), vr(r + 2, 2), vr(r + 2, 2)))
        for j in range(4): a("v_mov_b32 v%d, s49" % (r + 12 + j))
        for j in range(4): a("v_fmac_f32 v%d, s48, v%d" % (r + 12 + j, r + 8 + j))
        a("v_pk_mul_f32 %s, %s, %s" % (vr(r + 8, 2), vr(r, 2), vr(r + 12, 2)))
        a("v_pk_mul_f32 %s, %s, %s" % (vr(r + 10, 2), vr(r + 2, 2), vr(r + 14, 2)))
        for j in range(4): a("v_exp_f32 v%d, v%d" % (r + 8 + j, r + 8 + j))
        for j in range(4): a("v_add_f32 v%d, 1.0, v%d" % (r + 8 + j, r + 8 + j))
        for j in range(4): a("v_rcp_f32 v%d, v%d" % (r + 8 + j, r + 8 + j))
        a("s_nop 0")
        a("v_pk_mul_f32 %s, %s, %s" % (vr(r, 2), vr(r, 2), vr(r + 8, 2)))
        a("v_pk_mul_f32 %s, %s, %s" % (vr(r + 2, 2), vr(r + 2, 2), vr(r + 10, 2)))
        a("v_cvt_pk_bf16_f32 v%d, v%d, v%d" % (r + 4, r, r + 1))
        a("v_cvt_pk_bf16_f32 v%d, v%d, v%d" % (r + 5, r + 2, r + 3))
        a("buffer_store_dwordx2 %s, v%d, s[24:27], s46 offen" % (vr(r + 4, 2), 150 + k))
    a.label("K2_mdone")
    stamp(a, 3)
    stamp_flush(a, 1, 12)
    a("s_endpgm")
    a.label("K2_pref")
    if "nopref" in EXP: a("s_endpgm")
    a("s_lshl_b32 s36, s34, 1")
    a("s_add_u32 s36, s36, s35")
    a("s_sub_u32 s36, s36, 30")
    a("s_lshl_b32 s36, s36, 2")
    a("s_add_u32 s36, s36, s33")
    a("v_lshlrev_b32 v4, 7, v1")
    a("s_waitcnt lgkmcnt(0)")
    srd(a, 16, 6, 1376 * 4096)
    srd(a, 20, 4, 512 * 1024)
    if "nocolpf" not in EXP:
        a("s_and_b32 s40, s36, 7")
        a("v_lshlrev_b32 v5, 10, v1")
        a("s_lshl_b32 s41, s40, 16")
        a("s_add_u32 s41, s41, 384")
        a("buffer_load_dword v9, v5, s[20:23], s41 offen")
        a("s_and_b32 s41, s34, 1")
        a("s_cmp_eq_u32 s41, 0")
        a("s_cbranch_scc0 K2_pf1")
        a("v_lshlrev_b32 v5, 12, v1")
        a("s_lshl_b32 s41, s40, 18")
        a("s_lshl_b32 s42, s34, 9")
        a("s_add_u32 s41, s41, s42")
        a("s_add_u32 s41, s41, 384")
        for u in range(3):
            a("buffer_load_dword v9, v5, s[16:19], s41 offen")
            a("s_add_u32 s41, s41, %d" % (8 << 18))
    a.label("K2_pf1")
    a("s_cmp_lt_u32 s36, 64")
    a("s_cbranch_scc0 K2_pf2")
    a("s_lshl_b32 s39, s36, 13")
    a("buffer_load_dword v8, v4, s[20:23], s39 offen")
    a("s_add_u32 s36, s36, 56")
    a("s_branch K2_pf1")
    a.label("K2_pf2")
    a("s_sub_u32 s37, s36, 64")
    a("s_mul_i32 s38, s37, 171")
    a("s_lshr_b32 s38, s38, 9")
    a("s_mul_i32 s39, s38, 3")
    a("s_sub_u32 s39, s37, s39")
    a("s_mul_i32 s39, s39, 232")
    a("s_add_u32 s39, s39, s38")
    a("s_lshl_b32 s39, s39, 13")
    a("buffer_load_dword v8, v4, s[16:19], s39 offen")
    a("s_add_u32 s36, s36, 56")
    a("s_cmp_lt_u32 s36, %d" % (64 + 3 * PFSPLIT))
    a("s_cbranch_scc1 K2_pf2")
    stamp_flush(a, 1, 12)
    a("s_endpgm")
    a.label("K2_attn")
    if "noattn" in EXP: a("s_endpgm")
    VS = 1056; VOFF = 16384
    if "swaprole" in EXP: a("s_setprio 3")
    a("s_lshl_b32 s36, s34, 2")
    a("s_and_b32 s37, s35, 3")
    a("s_add_u32 s36, s36, s37")
    a("s_lshr_b32 s37, s35, 2")
    a("s_lshl_b32 s38, s36, 16")
    a("s_add_u32 s39, s38, %d" % KF)
    a("s_add_u32 s40, s38, %d" % VF)
    a("s_lshl_b32 s41, s37, 3")
    a("s_add_u32 s41, s41, s33")
    a("s_lshl_b32 s42, s41, 10")
    a("s_add_u32 s42, s42, s38")
    a("s_add_u32 s43, s42, 4096")
    a("s_lshl_b32 s44, s37, 3")
    a("s_lshl_b32 s45, s33, 2")
    a("s_add_u32 s44, s44, s45")
    a("s_sub_u32 s44, s44, 8")
    a("v_lshrrev_b32 v3, 5, v1")
    a("v_lshlrev_b32 v200, 9, v3")
    a("s_lshl_b32 s45, s33, 12")
    a("s_mul_i32 s46, s33, %d" % (4 * VS))
    a("s_add_u32 s46, s46, %d" % VOFF)
    a("v_mov_b32 v203, s46")
    a("s_lshl_b32 s50, s44, 10")
    a("s_cmp_lt_i32 s44, 0")
    a("s_cselect_b64 s[48:49], -1, 0")
    a("s_cselect_b32 s51, 0, s50")
    a("s_cselect_b32 s52, 0, 1024")
    a("s_cselect_b32 s50, %d, s50" % BIG)
    a("s_cselect_b32 s56, 0, 0x3f803f80")
    a("v_cndmask_b32 v202, v2, v200, s[48:49]")
    a("v_mov_b32 v204, s56")
    a("v_mov_b32 v205, s56")
    a("v_mov_b64 v[206:207], 0")
    a("s_waitcnt lgkmcnt(0)")
    srd_off(a, 16, 12, 39, 65536)
    srd_off(a, 20, 12, 40, 65536)
    srd(a, 24, 12, WS_USED)
    a("buffer_load_dwordx4 v[4:7], v2, s[24:27], s42 offen")
    for u in range(4):
        a("s_add_u32 m0, s45, %d" % (u * 1024))
        a("s_nop 0")
        a("buffer_load_dwordx4 v202, s[16:19], s51 offen lds")
        a("s_add_u32 m0, s46, %d" % (u * VS))
        a("s_add_u32 s51, s51, s52")
        a("buffer_load_dwordx4 v2, s[20:23], s50 offen lds")
        a("s_add_u32 s50, s50, 1024")
        a("ds_write_b64 v203, v[204:205] offset:%d" % (u * VS + 1024))
        a("ds_write_b64 v203, v[204:205] offset:%d" % (u * VS + 1032))
        if "onesall" not in EXP:
            a("ds_write_b64 v203, v[206:207] offset:%d" % (u * VS + 1040))
            a("ds_write_b64 v203, v[206:207] offset:%d" % (u * VS + 1048))
    a("buffer_load_dwordx4 v[208:211], v2, s[24:27], s43 offen")
    if "swaprole" in EXP: a("s_setprio 0")
    stamp(a, 1)
    KB = 8; VB = 20; PB = 36; SB = 48; COLD = 96; CDIAG = 112; CN = 128; OA = 144; C2O = 160; C2D = 176
    a("v_and_b32 v200, 31, v1")
    a("v_lshlrev_b32 v201, 2, v3")
    a("v_sub_u32 v200, v200, v201")
    a("v_mov_b32 v201, %s" % f32(NEGBIG))
    a("v_mov_b32 v202, 0")
    for i0 in range(0, 16, 4):
        for i in range(i0, i0 + 4):
            a("v_cmp_le_i32 s[%d:%d], %d, v200" % (56 + 2 * (i - i0), 57 + 2 * (i - i0), 8 * (i // 4) + i % 4))
        for i in range(i0, i0 + 4):
            m = "s[%d:%d]" % (56 + 2 * (i - i0), 57 + 2 * (i - i0))
            a("v_cndmask_b32 v%d, v201, v202, %s" % (CDIAG + i, m))
            a("v_cndmask_b32 v%d, v202, v201, %s" % (COLD + i, m))
    a("s_lshl_b32 s45, s33, 10")
    a("v_add_u32 v200, s45, v2")
    a("s_mul_i32 s45, s33, %d" % VS)
    a("s_add_u32 s45, s45, %d" % VOFF)
    a("v_and_b32 v204, 15, v1")
    a("v_lshlrev_b32 v204, 4, v204")
    a("v_lshl_add_u32 v204, v3, 8, v204")
    a("v_add_u32 v204, s45, v204")
    a("v_add_u32 v205, 512, v204")
    a("v_bfe_u32 v206, v1, 4, 1")
    a("v_cmp_eq_u32 vcc, 1, v206")
    a("s_add_u32 s45, s45, 1024")
    a("v_mov_b32 v206, s45")
    if "onesall" not in EXP:
        a("v_and_b32 v207, 11, v1")
        a("v_cmp_ne_u32 s[56:57], 0, v207")
        a("v_add_u32 v207, 16, v206")
        a("s_nop 0")
        a("v_cndmask_b32 v206, v206, v207, s[56:57]")
    a("s_lshr_b32 s45, s41, 1")
    a("v_cndmask_b32 v204, v204, v206, vcc")
    a("v_cndmask_b32 v205, v205, v206, vcc")
    a("s_lshl_b32 s45, s45, 16")
    a("s_lshl_b32 s46, s36, 11")
    a("s_add_u32 s45, s45, s46")
    a("s_and_b32 s46, s41, 1")
    a("s_lshl_b32 s46, s46, 10")
    a("s_add_u32 s45, s45, s46")
    a("s_add_u32 s45, s45, %d" % OF)
    a("s_mov_b32 s47, 0")
    a("s_waitcnt vmcnt(0) lgkmcnt(0)")
    lds_sync(a, 0, "K2_sy0", 202)
    stamp(a, 2)
    if "attnloadonly" in EXP: a("s_endpgm")
    a.label("K2_aloop")
    kread = lambda p: "ds_read_b128 %s, v200 offset:%d" % (vr(KB + 4 * (p % 3), 4), p * 1024)
    S = lambda i: SB + 16 * i
    def maxops(sb):
        for i in range(0, 16, 2):
            m = 202 + ((i // 2) & 1)
            a("v_max3_f32 v%d, v%d, v%d, v%d" % (m, m, sb + i, sb + i + 1))
    for p in range(3): a(kread(p))
    a("v_mov_b32 v202, %s" % f32(NEGBIG))
    a("v_mov_b32 v203, %s" % f32(NEGBIG))
    for i in range(0, 16, 2): a("v_mov_b64 %s, 0" % vr(OA + i, 2))
    for p in range(9):
        a("s_waitcnt lgkmcnt(%d)" % min(2, 8 - p))
        c = vr(COLD, 16) if p == 0 else (vr(CDIAG, 16) if p == 8 else "0")
        a("v_mfma_f32_32x32x16_bf16 %s, %s, v[4:7], %s" % (vr(S(p % 3), 16), vr(KB + 4 * (p % 3), 4), c))
        if p + 3 < 9: a(kread(p + 3))
        if p >= 1:
            a("s_nop 7" if p == 1 else "s_nop 1")
            maxops(S((p - 1) % 3))
    for p in range(3): a(kread(p))
    a("s_nop 7")
    maxops(S(8 % 3))
    a("v_max_f32 v202, v202, v203")
    a("v_mov_b32 v203, v202")
    a("s_nop 1")
    a("v_permlane32_swap_b32 v202, v203")
    a("v_max_f32 v202, v202, v203")
    for i in range(0, 16, 2):
        a("v_pk_add_f32 %s, %s, v[202:203] op_sel_hi:[1,0] neg_lo:[0,1] neg_hi:[0,1]" % (vr(C2O + i, 2), vr(COLD + i, 2)))
    a("v_sub_f32 v%d, 0, v202" % CN)
    a("v_sub_f32 v%d, 0, v202" % (CN + 1))
    for i in range(2, 16, 2): a("v_mov_b64 %s, %s" % (vr(CN + i, 2), vr(CN, 2)))
    for i in range(0, 16, 2):
        a("v_pk_add_f32 %s, %s, v[202:203] op_sel_hi:[1,0] neg_lo:[0,1] neg_hi:[0,1]" % (vr(C2D + i, 2), vr(CDIAG + i, 2)))
    def vread(p):
        return ["ds_read_b128 %s, v%d offset:%d" % (vr(VB + 8 * (p % 2) + 4 * i, 4), 204 + i, p * VS) for i in range(2)]
    def smfma(p):
        c = vr(C2O, 16) if p == 0 else (vr(C2D, 16) if p == 8 else vr(CN, 16))
        a("v_mfma_f32_32x32x16_bf16 %s, %s, v[4:7], %s" % (vr(S(p % 2), 16), vr(KB + 4 * (p % 3), 4), c))
    for r in vread(0): a(r)
    a("s_waitcnt lgkmcnt(4)")
    smfma(0)
    a(kread(3))
    for p in range(9):
        if p + 1 < 9:
            a("s_waitcnt lgkmcnt(%d)" % P2_WAIT_K[p])
            smfma(p + 1)
            for r in vread(p + 1): a(r)
            if p + 4 < 9: a(kread(p + 4))
            if p == 0: a("s_nop 7")
        sb = S(p % 2)
        if "noexp" not in EXP:
            for i in range(16): a("v_exp_f32 v%d, v%d" % (sb + i, sb + i))
        else: a("s_nop 7")
        for i in range(8): a("v_cvt_pk_bf16_f32 v%d, v%d, v%d" % (PB + i, sb + 2 * i, sb + 2 * i + 1))
        a("s_waitcnt lgkmcnt(%d)" % P2_WAIT_V[p])
        a("s_nop 0")
        for i in range(2):
            a("v_mfma_f32_32x32x16_bf16 %s, %s, %s, %s" % (vr(OA, 16), vr(VB + 8 * (p % 2) + 4 * i, 4), vr(PB + 4 * i, 4), vr(OA, 16)))
    a("v_add_u32 v200, 4096, v200")
    a("v_add_u32 v204, %d, v204" % (4 * VS))
    a("v_add_u32 v205, %d, v205" % (4 * VS))
    a("v_mov_b64 v[4:5], v[208:209]")
    a("v_mov_b64 v[6:7], v[210:211]")
    a("s_nop 7")
    a("v_rcp_f32 v202, v%d" % (OA + 8))
    a("s_nop 0")
    for i in range(0, 8, 2): a("v_pk_mul_f32 %s, %s, v[202:203] op_sel_hi:[1,0]" % (vr(OA + i, 2), vr(OA + i, 2)))
    for i in range(4): a("v_cvt_pk_bf16_f32 v%d, v%d, v%d" % (212 + i, OA + 2 * i, OA + 2 * i + 1))
    a("buffer_store_dwordx4 v[212:215], v2, s[24:27], s45 offen %s" % K2POL)
    a("s_add_u32 s45, s45, %d" % (2 * 65536))
    a("s_add_u32 s47, s47, 1")
    if STAMPS:
        a("s_cmp_eq_u32 s47, 1")
        a("s_cbranch_scc0 K2_st4")
        stamp(a, 3)
        a.label("K2_st4")
    a("s_cmp_lt_u32 s47, 2")
    a("s_cbranch_scc1 K2_aloop")
    stamp(a, 4)
    a("s_cmp_eq_u32 s33, 3")
    a("s_cbranch_scc0 K2_ncp")
    code_prefetch(a, "k2", "k3_kernel", 1, 8, 9)
    a.label("K2_ncp")
    if "l2pf3" in EXP:
        a("s_lshl_b32 s36, s35, 2")
        a("s_add_u32 s36, s36, s33")
        a("v_lshrrev_b32 v8, 3, v1")
        a("v_lshlrev_b32 v8, 12, v8")
        a("v_and_b32 v9, 7, v1")
        a("v_lshl_add_u32 v8, v9, 7, v8")
        a("v_lshrrev_b32 v9, 2, v1")
        a("v_lshlrev_b32 v9, 10, v9")
        a("v_and_b32 v10, 3, v1")
        a("v_lshl_add_u32 v9, v10, 7, v9")
        a("s_lshr_b32 s37, s34, 1")
        a("s_lshl_b32 s37, s37, 10")
        a("s_and_b32 s38, s34, 1")
        a("s_lshl_b32 s38, s38, 9")
        srd(a, 16, 6, 1376 * 4096)
        srd(a, 20, 4, 512 * 1024)
        a("s_lshl_b32 s39, s36, 15")
        a("s_add_u32 s39, s39, s37")
        a("buffer_load_dword v11, v8, s[16:19], s39 offen")
        a("s_add_u32 s36, s36, 128")
        a("s_cmp_lt_u32 s36, 172")
        a("s_cbranch_scc0 K2_l2a")
        a("s_add_u32 s39, s39, %d" % (128 << 15))
        a("buffer_load_dword v12, v8, s[16:19], s39 offen")
        a("s_branch K2_l2b")
        a.label("K2_l2a")
        a("s_cmp_lt_u32 s36, 204")
        a("s_cbranch_scc0 K2_l2b")
        a("s_sub_u32 s39, s36, 172")
        a("s_lshl_b32 s39, s39, 14")
        a("s_add_u32 s39, s39, s38")
        a("buffer_load_dword v12, v9, s[20:23], s39 offen")
        a.label("K2_l2b")
    stamp_flush(a, 1, 12)
    a.label("K2_end")
    a("s_endpgm")
    return a.text(), 232
PFSPLIT = int(os.environ.get("PFSPLIT", "72"))

def _p2_waits():
    q = ["K0", "K1", "K2", "V0a", "V0b", "K3"]
    wk, wv = [], []
    def need(name): return len(q) - 1 - q.index(name)
    for p in range(9):
        if p + 1 < 9:
            wk.append(need("K%d" % (p + 1)))
            q.extend(["V%da" % (p + 1), "V%db" % (p + 1)])
            if p + 4 < 9: q.append("K%d" % (p + 4))
        wv.append(need("V%db" % p))
    return wk, wv
P2_WAIT_K, P2_WAIT_V = _p2_waits()

def gen_k3():
    a = Asm()
    a("s_cmp_ge_u32 s2, 256")
    a("s_cbranch_scc1 K3_end")
    stamps_init(a)
    a("s_load_dwordx2 s[4:5], s[0:1], 16")
    a("s_load_dwordx4 s[8:11], s[0:1], 48")
    a("s_load_dwordx2 s[14:15], s[0:1], 72")
    a("s_load_dwordx2 s[12:13], s[0:1], 88")
    a("v_and_b32 v1, 63, v0")
    a("v_lshrrev_b32 v2, 6, v0")
    a("s_and_b32 s34, s2, 7")
    a("v_readfirstlane_b32 s33, v2")
    a("s_lshr_b32 s35, s2, 3")
    if "scramble" in EXP:
        a("s_add_u32 s34, s34, s35")
        a("s_and_b32 s34, s34, 7")
    a("v_lshlrev_b32 v2, 4, v1")
    if "k3part0" in EXP:
        a("s_lshr_b32 s36, s34, 1")
        a("s_lshl_b32 s36, s36, 3")
        a("s_lshr_b32 s37, s35, 2")
        a("s_add_u32 s36, s36, s37")
        a("s_and_b32 s37, s34, 1")
        a("s_lshl_b32 s37, s37, 2")
        a("s_and_b32 s38, s35, 3")
        a("s_add_u32 s37, s37, s38")
    else:
        a("s_lshl_b32 s36, s34, 2")
        a("s_lshr_b32 s37, s35, 3")
        a("s_add_u32 s36, s36, s37")
        a("s_and_b32 s37, s35, 7")
    a("v_lshrrev_b32 v3, 3, v1")
    a("v_bfe_u32 v4, v1, 4, 1")
    a("v_lshlrev_b32 v4, 2, v4")
    a("v_and_b32 v5, 7, v1")
    a("v_xor_b32 v4, v4, v5")
    a("v_lshlrev_b32 v4, 4, v4")
    a("s_lshl_b32 s40, s33, 14")
    ACC = 16; BUF = 80; WF = 144
    NR = 8
    a("s_cmp_eq_u32 s33, 0")
    a("s_cbranch_scc0 K3_mlp2")
    for role in (0, 1):
        if role == 0:
            a("v_lshl_add_u32 v8, v3, 10, v4")
            RDS = 1024; RSTR = 1024; HFSH = 9
            a("s_lshl_b32 s41, s37, 7")
            a("s_lshl_b32 s42, s36, 16")
            a("s_add_u32 s42, s42, %d" % OF)
            a("s_sub_u32 s46, %d, s41" % (512 * 1024))
            a("s_mov_b32 s44, 32")
            if "k3prio" in EXP: a("s_setprio 1")
            a("s_waitcnt lgkmcnt(0)")
            srd_off(a, 16, 4, 41, "s46")
            srd_off(a, 20, 12, 42, 32 * 2048)
        else:
            a.label("K3_mlp2")
            a("v_lshl_add_u32 v8, v3, 12, v4")
            RDS = 512; RSTR = 4096; HFSH = 10
            a("s_sub_u32 s43, s33, 1")
            a("s_mul_i32 s43, s43, 29")
            a("s_cmp_eq_u32 s33, 3")
            a("s_cselect_b32 s44, 28, 29")
            a("s_lshl_b32 s41, s43, 16")
            a("s_lshl_b32 s45, s36, 7")
            a("s_add_u32 s41, s41, s45")
            a("s_mul_i32 s42, s37, 176128")
            a("s_lshl_b32 s46, s43, 11")
            a("s_add_u32 s42, s42, s46")
            a("s_add_u32 s42, s42, %d" % UF)
            a("s_lshl_b32 s46, s44, 16")
            a("s_sub_u32 s46, s46, s45")
            a("s_lshl_b32 s47, s44, 11")
            a("s_waitcnt lgkmcnt(0)")
            srd_off(a, 16, 8, 41, "s46")
            srd_off(a, 20, 12, 42, "s47")
        def loads(b):
            r = []
            r.append("s_add_u32 m0, s40, %d" % (b * 2048))
            r.append("s_add_u32 s50, s48, %d" % (8 * RSTR))
            r.append("buffer_load_dwordx4 v8, s[16:19], s48 offen lds")
            r.append("s_add_u32 m0, s40, %d" % (b * 2048 + 1024))
            r.append("buffer_load_dwordx4 %s, v2, s[20:23], s49 offen" % vr(BUF + 8 * b, 4))
            r.append("buffer_load_dwordx4 v8, s[16:19], s50 offen lds")
            r.append("buffer_load_dwordx4 %s, v2, s[20:23], s49 offen offset:1024" % vr(BUF + 8 * b + 4, 4))
            r.append("s_add_u32 s48, s48, %d" % (16 * RSTR))
            r.append("s_add_u32 s49, s49, 2048")
            if "norot3" not in EXP:
                r.append("s_cmp_eq_u32 s49, s57")
                r.append("s_cselect_b32 s48, 0, s48")
                r.append("s_cselect_b32 s49, 0, s49")
            return r
        def trreads(b):
            r = []
            if "k3notr" in EXP: return ["s_nop 0"]
            for mt in range(2):
                for rd in range(2):
                    r.append("ds_read_b64_tr_b16 %s, v%d offset:%d" % (vr(WF + 8 * (b & 1) + 4 * mt + 2 * rd, 2), 10 + mt, b * 2048 + rd * RDS))
            return r
        if "norot3" in EXP:
            a("s_mov_b32 s48, 0")
            a("s_mov_b32 s49, 0")
        else:
            a("s_lshr_b32 s53, s35, 2")
            a("s_lshl_b32 s53, s53, 2")
            a("s_and_b32 s54, s35, 3")
            a("s_mul_i32 s54, s54, 7")
            a("s_add_u32 s53, s53, s54")
            a("s_sub_u32 s54, s53, s44")
            a("s_cmp_ge_u32 s53, s44")
            a("s_cselect_b32 s53, s54, s53")
            a("s_lshl_b32 s48, s53, %d" % ((16 * RSTR).bit_length() - 1))
            a("s_lshl_b32 s49, s53, 11")
            a("s_lshl_b32 s57, s44, 11")
        for b in range(NR - 1):
            for l in loads(b): a(l)
        stamp(a, 1)
        a("v_bfe_u32 v6, v1, 2, 2")
        a("v_lshlrev_b32 v6, 7, v6")
        a("v_bfe_u32 v7, v1, 3, 1")
        a("v_lshl_add_u32 v6, v7, 6, v6")
        a("v_bfe_u32 v7, v1, 4, 1")
        a("v_lshl_add_u32 v6, v7, 5, v6")
        a("v_and_b32 v7, 3, v1")
        a("v_lshl_add_u32 v6, v7, 3, v6")
        a("v_add_u32 v6, s40, v6")
        a("v_lshrrev_b32 v7, 5, v1")
        a("v_lshl_add_u32 v10, v7, %d, v6" % HFSH)
        a("v_xor_b32 v11, 64, v10")
        for i in range(0, 64, 2): a("v_mov_b64 %s, 0" % vr(ACC + i, 2))
        a("s_sub_u32 s51, s44, 2")
        a("s_waitcnt vmcnt(%d)" % (4 * (NR - 2)))
        for r in trreads(0): a(r)
        L = "K3_loop%d" % role
        a.label(L)
        for b in range(NR):
            nb = (b + 1) % NR
            a("s_cmp_lt_i32 s51, 5")
            a("s_cbranch_scc1 %s_t%d" % (L, b))
            a("s_waitcnt vmcnt(%d)" % (4 * (NR - 3)))
            a.label("%s_r%d" % (L, b))
            for r in trreads(nb): a(r)
            a("s_waitcnt lgkmcnt(4)")
            mf = []
            for i in range(2):
                for j in range(2):
                    acc = vr(ACC + (i * 2 + j) * 16, 16)
                    wf = lambda t: vr(WF + 8 * (b & 1) + 4 * t, 4)
                    af = lambda t: vr(BUF + 8 * b + 4 * t, 4)
                    if role == 0: mf.append("v_mfma_f32_32x32x16_bf16 %s, %s, %s, %s" % (acc, wf(i), af(j), acc))
                    else: mf.append("v_mfma_f32_32x32x16_bf16 %s, %s, %s, %s" % (acc, af(i), wf(j), acc))
            if "k3nomfma" in EXP: mf = ["s_nop 0"] * 4
            a(mf[0]); a(mf[1])
            a("s_cmp_lt_i32 s51, 6")
            a("s_cbranch_scc1 %s_s%d" % (L, b))
            for l in loads((b + NR - 1) % NR): a(l)
            a.label("%s_s%d" % (L, b))
            a(mf[2]); a(mf[3])
            a("s_sub_u32 s51, s51, 1")
            a("s_cmp_lt_i32 s51, -1")
            if b < NR - 1: a("s_cbranch_scc1 K3_red")
            else:
                a("s_cbranch_scc0 %s" % L)
                a("s_branch K3_red")
        for b in range(NR):
            a.label("%s_t%d" % (L, b))
            a("s_cmp_lt_i32 s51, 2")
            a("s_cbranch_scc1 %s_u%d" % (L, b))
            a("s_waitcnt vmcnt(8)")
            a("s_branch %s_r%d" % (L, b))
            a.label("%s_u%d" % (L, b))
            a("s_waitcnt vmcnt(0)")
            a("s_branch %s_r%d" % (L, b))
    a.label("K3_red")
    stamp(a, 2)
    srd(a, 24, 12, WS_USED)
    srd(a, 28, 10, 4096)
    srd(a, 44, 14, 2048 * 1024)
    a("s_lshl_b32 s52, s36, 6")
    a("s_lshl_b32 s53, s33, 4")
    a("s_add_u32 s52, s52, s53")
    a("s_lshl_b32 s53, s52, 2")
    a("s_add_u32 s53, s53, %d" % GW)
    a("s_lshl_b32 s54, s52, 1")
    a("v_lshlrev_b32 v4, 2, v3")
    a("v_lshlrev_b32 v5, 1, v3")
    a("buffer_load_dword v12, v4, s[24:27], s53 offen")
    a("buffer_load_dword v13, v4, s[24:27], s53 offen offset:32")
    a("buffer_load_ushort v14, v5, s[28:31], s54 offen")
    a("buffer_load_ushort v15, v5, s[28:31], s54 offen offset:16")
    RST = 272; WB = 64 * RST
    a("v_and_b32 v6, 31, v1")
    a("v_mul_u32_u24 v6, %d, v6" % RST)
    a("v_lshl_add_u32 v6, v7, 4, v6")
    a("s_mul_i32 s55, s33, %d" % WB)
    a("s_add_u32 s55, s55, 65536")
    a("v_add_u32 v6, s55, v6")
    for i in range(2):
        for j in range(2):
            for g in range(4):
                a("ds_write_b128 v6, %s offset:%d" % (vr(ACC + (i * 2 + j) * 16 + 4 * g, 4), j * 32 * RST + i * 128 + g * 32))
    a("s_lshl_b32 s55, s33, 4")
    a("v_add_u32 v6, s55, v3")
    a("v_mul_u32_u24 v6, %d, v6" % RST)
    a("v_and_b32 v8, 7, v1")
    a("v_lshl_add_u32 v6, v8, 5, v6")
    a("v_add_u32 v6, 65536, v6")
    a("v_lshlrev_b32 v8, 4, v8")
    a("v_lshl_add_u32 v8, v3, 10, v8")
    a("s_lshl_b32 s55, s52, 10")
    a("s_lshl_b32 s56, s37, 7")
    a("s_add_u32 s55, s55, s56")
    a("s_add_u32 s56, s55, 8192")
    a("s_waitcnt lgkmcnt(0)")
    a("s_barrier")
    stamp(a, 3)
    R = 80
    for ps in range(2):
        for wv in range(4):
            for hh in range(2):
                a("ds_read_b128 %s, v6 offset:%d" % (vr(R + 32 * ps + 8 * wv + 4 * hh, 4), wv * WB + ps * 8 * RST + hh * 16))
    a("s_waitcnt vmcnt(0)")
    for ps in range(2):
        g = 12 + ps; b2 = 14 + ps
        a("v_lshlrev_b32 v%d, 16, v%d" % (150 + 6 * ps + 4, b2))
        a("v_sub_f32 v%d, 1.0, v%d" % (150 + 6 * ps, g))
        a("v_cvt_pk_bf16_f32 v%d, v%d, v%d" % (150 + 6 * ps, 150 + 6 * ps, 150 + 6 * ps))
        a("v_lshlrev_b32 v%d, 16, v%d" % (150 + 6 * ps, 150 + 6 * ps))
        a("v_mov_b32 v%d, v%d" % (150 + 6 * ps + 2, g))
    for ps in range(2):
        r = R + 32 * ps; c = 150 + 6 * ps
        a("s_waitcnt lgkmcnt(%d)" % (8 - 8 * ps))
        for k in range(4):
            a("v_pk_add_f32 %s, %s, %s" % (vr(r + 8 + 2 * k, 2), vr(r + 8 + 2 * k, 2), vr(r + 16 + 2 * k, 2)))
        for k in range(4):
            a("v_pk_add_f32 %s, %s, %s op_sel_hi:[1,0]" % (vr(r + 24 + 2 * k, 2), vr(r + 24 + 2 * k, 2), vr(c + 4, 2)))
        for k in range(4):
            a("v_pk_mul_f32 %s, %s, %s op_sel_hi:[1,0]" % (vr(r + 2 * k, 2), vr(r + 2 * k, 2), vr(c + 2, 2)))
        for k in range(4):
            a("v_pk_add_f32 %s, %s, %s" % (vr(r + 8 + 2 * k, 2), vr(r + 8 + 2 * k, 2), vr(r + 24 + 2 * k, 2)))
        for k in range(4):
            a("v_pk_fma_f32 %s, %s, %s, %s op_sel_hi:[1,0,1]" % (vr(r + 2 * k, 2), vr(r + 8 + 2 * k, 2), vr(c, 2), vr(r + 2 * k, 2)))
        for k in range(4): a("v_cvt_pk_bf16_f32 v%d, v%d, v%d" % (r + 16 + k, r + 2 * k, r + 2 * k + 1))
        a("buffer_store_dwordx4 %s, v8, s[44:47], s%d offen" % (vr(r + 16, 4), 55 + ps))
    stamp(a, 4)
    stamp_flush(a, 2, 12)
    a.label("K3_end")
    a("s_endpgm")
    a.label("CODE_END")
    return a.text(), 162

HEADER = open("gated_mix__sliding_block__mixer_token_mlp__prompt.s.ref").read().split("; Override launch")[0]

def build(kernels):
    s = HEADER
    for name, grid, block, lds, _ in kernels:
        s += "; @launch kernel=%s grid=(%d,1,1) block=(%d,1,1) lds=%d\n" % (name, grid, block, lds)
    s += '.amdgcn_target "amdgcn-amd-amdhsa--gfx950"\n.text\n'
    descs = ""
    for name, grid, block, lds, fn in kernels:
        body, vg = fn()
        s += kernel_header(name) + body
        descs += kernel_desc(name, vg)
    s += '.section .rodata,"a"\n' + descs
    if os.environ.get("ALLSC1", "1") == "1":
        out = []
        for l in s.split("\n"):
            if "buffer_store_" in l and "sc1" not in l and "s[84:87]" not in l: l = l.rstrip() + " sc1"
            out.append(l)
        s = "\n".join(out)
    return s

if __name__ == "__main__":
    ks = [("k1_kernel", 256, 512, 2 * K1W, gen_k1), ("k2_kernel", 256, 512, MOFF + 4 * NRM * 4096, gen_k2), ("k3_kernel", 256, 256, 65536 + 69632, gen_k3)]
    LIST = os.environ.get("LIST", "")
    out = sys.argv[1] if len(sys.argv) > 1 else "out.s"
    if len(sys.argv) > 2 and sys.argv[2] == "stamps": STAMPS = True
    txt = build(ks)
    if LIST:
        lines = txt.split("\n")
        ll = [l for l in lines if l.startswith("; @launch")]
        i0 = lines.index(ll[0])
        lines = lines[:i0] + [ll[int(c)] for c in LIST] + lines[i0 + len(ll):]
        txt = "\n".join(lines)
    open(out, "w").write(txt)
```

```python
import sys, struct, os
from asmlib import *

QF = 0
KF = 2 << 20
VF = 4 << 20
HT = 6 << 20
W1O = 9 << 20
GW = 14 << 20
OF = 15 << 20
UF = 17 << 20
WS_USED = 19 << 20
BIG = 0x40000000

STAMPS = False
EXP = set(os.environ.get("EXP", "").split(","))
AUXPOL = os.environ.get("AUXPOL", "")
QKVPOL = os.environ.get("QKVPOL", "")
K2POL = os.environ.get("K2POL", "")
PRIO = os.environ.get("PRIO", "")
TS = 24 << 20
def f32(x): return "0x%08x" % struct.unpack("<I", struct.pack("<f", x))[0]
QSCALE = 0.25 * 1.4426950408889634
GC1 = -2.0 * 0.7978845608028654 * 1.4426950408889634
GC2 = GC1 * 0.044715
NEGBIG = -1.0e30

def stamp(a, n):
    if STAMPS: a("s_memrealtime s[%d:%d]" % (70 + 2 * n, 71 + 2 * n))
def stamp_flush(a, kidx, wsptr, nst=6):
    if not STAMPS: return
    a("s_waitcnt vmcnt(0)")
    stamp(a, nst - 1)
    a("s_memtime s[92:93]")
    a("s_mov_b32 s84, s%d" % wsptr)
    a("s_and_b32 s85, s%d, 0xffff" % (wsptr + 1))
    a("s_mov_b32 s86, 0x%x" % (32 << 20))
    a("s_mov_b32 s87, 0x00020000")
    a("v_lshrrev_b32 v0, 6, v0")
    a("s_lshl_b32 s88, s2, 4")
    a("v_add_u32 v0, s88, v0")
    a("v_lshlrev_b32 v0, 5, v0")
    a("s_waitcnt lgkmcnt(0)")
    a("s_mov_b32 s88, %d" % (TS + (kidx << 20)))
    for i in range(nst):
        a("v_mov_b32 v1, s%d" % (70 + 2 * i))
        a("buffer_store_dword v1, v0, s[84:87], s88 offen offset:%d" % (4 * i))
        a("s_nop 1")
    a("s_sub_u32 s92, s92, s90")
    a("v_mov_b32 v1, s92")
    a("buffer_store_dword v1, v0, s[84:87], s88 offen offset:24")
def stamps_init(a):
    if STAMPS:
        for i in range(1, 5): a("s_mov_b64 s[%d:%d], 0" % (70 + 2 * i, 71 + 2 * i))
        stamp(a, 0)
        a("s_memtime s[90:91]")

def srd(a, d, base, nrec):
    a("s_mov_b32 s%d, s%d" % (d, base))
    a("s_and_b32 s%d, s%d, 0xffff" % (d + 1, base + 1))
    a("s_mov_b32 s%d, %s" % (d + 2, nrec if isinstance(nrec, str) else "0x%x" % nrec))
    a("s_mov_b32 s%d, 0x00020000" % (d + 3))
def srd_off(a, d, base, soff, nrec):
    a("s_add_u32 s%d, s%d, s%d" % (d, base, soff))
    a("s_addc_u32 s%d, s%d, 0" % (d + 1, base + 1))
    a("s_and_b32 s%d, s%d, 0xffff" % (d + 1, d + 1))
    a("s_mov_b32 s%d, %s" % (d + 2, nrec if isinstance(nrec, str) else "0x%x" % nrec))
    a("s_mov_b32 s%d, 0x00020000" % (d + 3))

def code_prefetch(a, tag, start, nchunks, vaddr, vdead):
    if "nocodepf" in EXP: return
    a("s_getpc_b64 s[64:65]")
    a.label("CP_%s" % tag)
    a("s_add_u32 s64, s64, %s-CP_%s" % (start, tag))
    a("s_addc_u32 s65, s65, %s" % ("-1" if tag.endswith("n") else "0"))
    a("v_lshlrev_b32 v%d, 7, v1" % vaddr)
    for c in range(nchunks):
        a("v_min_u32 v%d, CODE_END-%s-4, v%d" % (vaddr + 2, start, vaddr))
        a("global_load_dword v%d, v%d, s[64:65]" % (vdead, vaddr + 2))
        if c + 1 < nchunks: a("v_add_u32 v%d, 8192, v%d" % (vaddr, vaddr))

K1W = 5 * 16384
def gen_k1():
    a = Asm()
    a("s_cmp_ge_u32 s2, 256")
    a("s_cbranch_scc1 K1_end")
    stamps_init(a)
    a("s_load_dwordx4 s[4:7], s[0:1], 0")
    a("s_load_dwordx2 s[8:9], s[0:1], 32")
    a("s_load_dwordx2 s[10:11], s[0:1], 64")
    a("s_load_dwordx2 s[12:13], s[0:1], 88")
    a("v_and_b32 v1, 63, v0")
    a("v_lshrrev_b32 v2, 6, v0")
    a("s_and_b32 s34, s2, 7")
    a("v_readfirstlane_b32 s33, v2")
    a("s_lshr_b32 s35, s2, 3")
    if "scramble" in EXP:
        a("s_add_u32 s34, s34, s35")
        a("s_and_b32 s34, s34, 7")
    a("s_cmp_ge_u32 s35, 24")
    a("s_cbranch_scc1 K1_aux")
    a("s_mul_i32 s36, s35, 43")
    a("s_lshr_b32 s36, s36, 8")
    a("s_mul_i32 s37, s36, 6")
    a("s_sub_u32 s37, s35, s37")
    a("s_lshr_b32 s38, s34, 1")
    a("s_lshl_b32 s38, s38, 2")
    a("s_add_u32 s38, s38, s36")
    a("s_lshr_b32 s39, s37, 1")
    a("s_and_b32 s40, s34, 1")
    a("s_lshl_b32 s40, s40, 1")
    a("s_and_b32 s41, s37, 1")
    a("s_add_u32 s40, s40, s41")
    a("s_cmp_lt_u32 s33, 4")
    a("s_cbranch_scc1 K1_cons")
    a("s_sub_u32 s33, s33, 4")
    a("s_lshl_b32 s41, s39, 9")
    a("s_lshl_b32 s42, s40, 7")
    a("s_add_u32 s41, s41, s42")
    a("s_and_b32 s42, s33, 1")
    a("s_lshl_b32 s42, s42, 2")
    a("v_lshrrev_b32 v3, 4, v1")
    a("v_add_u32 v4, s42, v3")
    a("v_and_b32 v5, 7, v1")
    a("v_xor_b32 v4, v4, v5")
    a("v_lshrrev_b32 v5, 3, v1")
    a("v_lshlrev_b32 v5, 10, v5")
    a("v_lshl_add_u32 v10, v4, 4, v5")
    a("v_lshlrev_b32 v4, 2, v3")
    a("v_and_b32 v5, 15, v1")
    a("v_xor_b32 v4, v4, v5")
    a("v_mul_u32_u24 v5, 3072, v3")
    a("v_lshl_add_u32 v11, v4, 4, v5")
    a("s_lshl_b32 s46, s38, 7")
    a("s_lshl_b32 s44, s33, 3")
    a("s_add_u32 s46, s46, s44")
    a("s_lshl_b32 s46, s46, 10")
    a("s_mul_i32 s47, s33, 12288")
    a("s_lshl_b32 s45, s41, 1")
    a("s_add_u32 s47, s47, s45")
    a("s_lshl_b32 s48, s33, 10")
    if "norot1" in EXP:
        a("s_mov_b32 s57, 0")
    else:
        a("s_lshl_b32 s57, s36, 1")
        a("s_add_u32 s57, s57, s37")
        a("s_and_b32 s57, s57, 7")
    a("s_waitcnt lgkmcnt(0)")
    srd(a, 16, 4, 2048 * 1024)
    srd(a, 20, 6, 512 * 3072)
    stamp(a, 1)
    def issue():
        a("s_lshl_b32 s58, s57, 7")
        a("s_add_u32 s58, s58, s46")
        a("s_mul_i32 s59, s57, 196608")
        a("s_add_u32 s59, s59, s47")
        for u in range(4):
            a("s_add_u32 m0, s48, %d" % (u * 4096))
            a("s_add_u32 s50, s58, %d" % (u * 32768))
            a("buffer_load_dwordx4 v10, s[16:19], s50 offen lds")
            a("s_add_u32 m0, s48, %d" % (K1W + u * 4096))
            a("s_add_u32 s50, s59, %d" % (u * 49152))
            a("buffer_load_dwordx4 v11, s[20:23], s50 offen lds")
        a("s_add_u32 s57, s57, 1")
        a("s_and_b32 s57, s57, 7")
        a("s_add_u32 s48, s48, 16384")
        a("s_cmp_ge_u32 s48, %d" % K1W)
        a("s_cselect_b32 s48, s60, s48")
    a("s_mov_b32 s49, 0")
    a("s_mov_b32 s60, s48")
    a.label("K1_ld")
    issue()
    a("s_add_u32 s49, s49, 1")
    a("s_cmp_lt_u32 s49, 3")
    a("s_cbranch_scc1 K1_ld")
    a("s_cmp_eq_u32 s49, 4")
    a("s_cbranch_scc1 K1_ld")
    a("s_cmp_eq_u32 s49, 5")
    a("s_cbranch_scc0 K1_ld2")
    a("s_waitcnt vmcnt(24)")
    a("s_barrier")
    a.label("K1_ld2")
    a("s_waitcnt vmcnt(16)")
    a("s_barrier")
    a("s_cmp_lt_u32 s49, 8")
    a("s_cbranch_scc1 K1_ld")
    stamp(a, 3)
    a("s_waitcnt vmcnt(8)")
    a("s_barrier")
    a("s_waitcnt vmcnt(0)")
    a("s_barrier")
    if "now1pf" not in EXP and "ldtouch" in EXP:
        a("s_mul_i32 s38, s34, 640")
        a("s_sub_u32 s39, s34, 4")
        a("s_mul_i32 s39, s39, 768")
        a("s_cmp_lt_u32 s34, 4")
        a("s_cselect_b32 s38, s38, s39")
        a("s_movk_i32 s39, 640")
        a("s_cselect_b32 s39, 512, s39")
        a("s_cmp_eq_u32 s34, 7")
        a("s_cselect_b32 s39, 384, s39")
        a("v_and_b32 v12, 7, v1")
        a("v_lshlrev_b32 v12, 7, v12")
        a("v_min_u32 v12, s39, v12")
        a("v_lshrrev_b32 v13, 3, v1")
        a("v_mul_u32_u24 v13, 5504, v13")
        a("v_add_u32 v12, v12, v13")
        a("s_lshl_b32 s40, s35, 2")
        a("s_add_u32 s40, s40, s33")
        a("s_mul_i32 s41, s40, %d" % (8 * 5504))
        a("s_add_u32 s38, s38, s41")
        srd(a, 20, 8, 2048 * 2752)
        a("buffer_load_dword v14, v12, s[20:23], s38 offen")
        a("s_cmp_lt_u32 s40, 32")
        a("s_cbranch_scc0 K1_ldx")
        a("s_add_u32 s38, s38, %d" % (96 * 8 * 5504))
        a("buffer_load_dword v15, v12, s[20:23], s38 offen")
        a.label("K1_ldx")
    stamp_flush(a, 0, 12)
    a("s_endpgm")
    a.label("K1_cons")
    a("s_cmp_eq_u32 s33, 3")
    a("s_cbranch_scc0 K1_ncp")
    code_prefetch(a, "k1n", "k1_kernel", 3, 28, 29)
    a.label("K1_ncp")
    a("s_lshr_b32 s51, s33, 1")
    a("s_and_b32 s52, s33, 1")
    a("v_bfe_u32 v3, v1, 1, 3")
    a("v_lshrrev_b32 v4, 5, v1")
    a("v_xor_b32 v5, v3, v4")
    a("v_and_b32 v6, 31, v1")
    a("s_lshl_b32 s53, s51, 13")
    a("v_lshl_add_u32 v6, v6, 7, s53")
    for ks in range(4):
        a("v_xor_b32 v7, %d, v5" % (2 * ks))
        a("v_lshl_add_u32 v%d, v7, 4, v6" % (12 + ks))
    a("v_bfe_u32 v3, v1, 2, 2")
    a("v_lshl_add_u32 v5, v4, 3, v3")
    a("v_lshlrev_b32 v5, 8, v5")
    a("s_lshl_b32 s53, s52, 1")
    a("v_xor_b32 v6, s53, v3")
    a("v_lshl_add_u32 v5, v6, 6, v5")
    a("v_bfe_u32 v6, v1, 4, 1")
    a("v_lshl_add_u32 v5, v6, 5, v5")
    a("v_and_b32 v6, 3, v1")
    a("v_lshl_add_u32 v5, v6, 3, v5")
    a("v_add_u32 v16, %d, v5" % K1W)
    a("v_xor_b32 v17, 64, v16")
    for i in range(6): a("v_mov_b32 v%d, v%d" % (20 + i, 12 + i))
    ACC = 96
    for i in range(0, 64, 2): a("v_mov_b64 %s, 0" % vr(ACC + i, 2))
    XFR = 32
    def reads(ks, b):
        r = []
        if "k1noread" in EXP: return ["s_nop 0"]
        for t in range(2):
            r.append("ds_read_b128 %s, v%d offset:%d" % (vr(XFR + b * 16 + t * 4, 4), 20 + ks, t * 4096))
        for mt in range(2):
            for rd in range(2):
                r.append("ds_read_b64_tr_b16 %s, v%d offset:%d" % (vr(XFR + b * 16 + 8 + mt * 4 + rd * 2, 2), 24 + mt, ks * 4096 + rd * 1024))
        return r
    def mfmas(b, vtype):
        r = []
        if "k1nomfma" in EXP: return ["s_nop 0"]
        for i in range(2):
            for j in range(2):
                acc = vr(ACC + (i * 2 + j) * 16, 16)
                xf = lambda t: vr(XFR + b * 16 + t * 4, 4)
                wf = lambda t: vr(XFR + b * 16 + 8 + t * 4, 4)
                if vtype: r.append("v_mfma_f32_32x32x16_bf16 %s, %s, %s, %s" % (acc, xf(i), wf(j), acc))
                else: r.append("v_mfma_f32_32x32x16_bf16 %s, %s, %s, %s" % (acc, wf(i), xf(j), acc))
        return r
    a("s_lshl_b32 s53, s40, 3")
    a("s_lshl_b32 s54, s52, 2")
    a("s_add_u32 s53, s53, s54")
    a("s_lshl_b32 s53, s53, 16")
    a("s_lshl_b32 s54, s38, 2")
    a("s_lshl_b32 s55, s51, 1")
    a("s_add_u32 s54, s54, s55")
    a("s_lshl_b32 s54, s54, 10")
    a("s_add_u32 s53, s53, s54")
    a("s_lshl_b32 s54, s39, 21")
    a("s_add_u32 s53, s53, s54")
    a("s_cmp_eq_u32 s39, 0")
    a("s_cselect_b32 s56, %s, 1.0" % f32(QSCALE))
    a("s_mov_b32 s49, 0")
    a("s_mov_b32 s54, 0")
    a("s_waitcnt lgkmcnt(0)")
    srd(a, 24, 12, WS_USED)
    stamp(a, 1)
    a("s_barrier")
    stamp(a, 2)
    for r in reads(0, 0): a(r)
    for r in reads(1, 1): a(r)
    a("s_cmp_eq_u32 s39, 2")
    a("s_cbranch_scc1 K1_loop_v")
    for vtype in (0, 1):
        L = "K1_loop_v" if vtype else "K1_loop_qk"
        a.label(L)
        for ks in range(4):
            if ks == 2:
                a("s_add_u32 s54, s54, 16384")
                a("s_cmp_ge_u32 s54, %d" % K1W)
                a("s_cselect_b32 s54, 0, s54")
                for i in range(6): a("v_add_u32 v%d, s54, v%d" % (20 + i, 12 + i))
                a("s_cmp_eq_u32 s49, 7")
                a("s_cbranch_scc1 %s_nb" % L)
                a("s_barrier")
                a.label(L + "_nb")
            a("s_waitcnt lgkmcnt(6)")
            rd = reads((ks + 2) % 4, (ks + 2) % 4)
            mf = mfmas(ks, vtype)
            for n in range(len(mf)):
                a(mf[n])
                for r in rd[2 * n:2 * n + 2]: a(r)
        a("s_add_u32 s49, s49, 1")
        a("s_cmp_lt_u32 s49, 8")
        a("s_cbranch_scc1 %s" % L)
        a("s_waitcnt lgkmcnt(0)")
        stamp(a, 3)
        if not vtype:
            a("v_lshlrev_b32 v3, 4, v1")
        else:
            a("v_bfe_u32 v3, v1, 4, 1")
            a("v_lshlrev_b32 v3, 16, v3")
            a("v_lshrrev_b32 v4, 5, v1")
            a("v_lshl_add_u32 v3, v4, 8, v3")
            a("v_and_b32 v4, 15, v1")
            a("v_lshl_add_u32 v3, v4, 4, v3")
        a("s_nop 7")
        for i in range(2):
            for j in range(2):
                base = ACC + (i * 2 + j) * 16
                if i == 1 and j == 1: a("s_nop 3")
                for half in range(2):
                    t = 32 + ((i * 4 + j * 2 + half) % 4) * 4
                    for k in range(4):
                        r0 = base + half * 8 + 2 * k
                        if not vtype:
                            a("v_pk_mul_f32 %s, %s, s[56:57] op_sel_hi:[1,0]" % (vr(r0, 2), vr(r0, 2)))
                        a("v_cvt_pk_bf16_f32 v%d, v%d, v%d" % (t + k, r0, r0 + 1))
                    if not vtype:
                        a("s_add_u32 s54, s53, %d" % ((2 * i + half) * 65536))
                        a("buffer_store_dwordx4 %s, v3, s[24:27], s54 offen offset:%d %s" % (vr(t, 4), j * 1024, QKVPOL))
                    else:
                        a("s_add_u32 s54, s53, %d" % (2 * j * 65536))
                        a("buffer_store_dwordx4 %s, v3, s[24:27], s54 offen offset:%d %s" % (vr(t, 4), i * 1024 + half * 512, QKVPOL))
        stamp_flush(a, 0, 12)
        a("s_endpgm")
    a.label("K1_aux")
    RS = 1040
    a("s_sub_u32 s36, s35, 24")
    a("s_lshl_b32 s37, s34, 3")
    a("s_add_u32 s36, s36, s37")
    a("v_lshrrev_b32 v3, 4, v1")
    a("v_and_b32 v4, 15, v1")
    a("v_lshlrev_b32 v5, 4, v4")
    a("v_lshl_add_u32 v6, v3, 10, v5")
    a("v_lshlrev_b32 v7, 4, v1")
    a("s_lshl_b32 s37, s36, 15")
    a("s_lshl_b32 s38, s33, 12")
    a("s_add_u32 s37, s37, s38")
    a("s_waitcnt lgkmcnt(0)")
    srd(a, 16, 4, 2048 * 1024)
    srd(a, 28, 10, 1024)
    XR = 32; GR = 48; D0 = 64; CP = 96
    for t in range(4):
        a("buffer_load_dwordx4 %s, v6, s[16:19], s37 offen offset:%d" % (vr(XR + 4 * t, 4), t * 256))
    for t in range(4):
        a("buffer_load_dwordx4 %s, v5, s[28:31], 0 offen offset:%d" % (vr(GR + 4 * t, 4), t * 256))
    stamp(a, 1)
    srd(a, 20, 8, 2048 * 2752)
    srd(a, 24, 12, WS_USED)
    a("s_lshl_b32 s43, s36, 4")
    a("s_lshl_b32 s44, s33, 1")
    a("s_add_u32 s43, s43, s44")
    a("s_mul_i32 s44, s43, 5504")
    a("s_add_u32 s44, s44, 2752")
    a("s_add_u32 s45, s44, 5504")
    a("s_lshl_b32 s46, s43, 7")
    a("s_add_u32 s46, s46, %d" % W1O)
    a("v_lshrrev_b32 v31, 3, v1")
    a("v_lshlrev_b32 v31, 17, v31")
    a("v_and_b32 v27, 7, v1")
    a("v_lshl_add_u32 v31, v27, 4, v31")
    a("s_mul_i32 s38, s34, 640")
    a("s_sub_u32 s39, s34, 4")
    a("s_mul_i32 s39, s39, 768")
    a("s_cmp_lt_u32 s34, 4")
    a("s_cselect_b32 s38, s38, s39")
    a("s_movk_i32 s39, 640")
    a("s_cselect_b32 s39, 512, s39")
    a("s_cmp_eq_u32 s34, 7")
    a("s_cselect_b32 s39, 384, s39")
    a("v_and_b32 v28, 7, v1")
    a("v_lshlrev_b32 v28, 7, v28")
    a("v_min_u32 v28, s39, v28")
    a("v_lshrrev_b32 v9, 3, v1")
    a("v_mul_u32_u24 v9, 5504, v9")
    a("v_add_u32 v28, v28, v9")
    a("s_sub_u32 s40, s35, 24")
    a("s_lshl_b32 s40, s40, 3")
    a("s_add_u32 s40, s40, s33")
    a("s_mul_i32 s40, s40, %d" % (8 * 5504))
    a("s_add_u32 s38, s38, s40")
    a("v_bfe_u32 v29, v1, 2, 2")
    a("v_lshl_add_u32 v29, v3, 2, v29")
    a("v_and_b32 v30, 3, v1")
    a("v_lshlrev_b32 v30, 3, v30")
    a("v_mul_u32_u24 v29, %d, v29" % (2 * RS))
    a("v_add_u32 v29, v29, v30")
    a("s_lshl_b32 s41, s33, 7")
    a("v_add_u32 v29, s41, v29")
    a("s_mul_i32 s40, s36, 3072")
    a("s_add_u32 s40, s40, %d" % HT)
    for d in range(4):
        a("s_lshl_b32 s41, s33, 2")
        a("s_add_u32 s41, s41, %d" % d)
        a("s_cmp_ge_u32 s41, 30")
        a("s_addc_u32 s41, s41, 0")
        a("s_mul_i32 s42, s41, 43")
        a("s_lshr_b32 s42, s42, 7")
        a("s_mul_i32 s50, s42, 3")
        a("s_sub_u32 s41, s41, s50")
        a("s_lshl_b32 s41, s41, 10")
        a("s_mul_i32 s42, s42, 196608")
        a("s_add_u32 s41, s41, s42")
        a("s_add_u32 s%d, s41, s40" % (52 + d))
    a("s_lshl_b32 s42, s36, 7")
    a("s_lshl_b32 s41, s33, 4")
    a("s_add_u32 s42, s42, s41")
    a("s_add_u32 s42, s42, %d" % GW)
    a("s_lshl_b32 s41, s33, 2")
    a("v_add_u32 v9, s41, v3")
    a("v_mul_u32_u24 v9, %d, v9" % RS)
    a("v_add_u32 v9, v9, v5")
    a("v_lshlrev_b32 v30, 2, v3")
    a("v_mov_b32 v8, 0x3f803f80")
    a("v_mov_b64 v[10:11], 0")
    a("v_mov_b64 v[12:13], 0")
    def w1loads():
        for r in range(2):
            for t in range(3):
                a("buffer_load_dwordx4 %s, v7, s[20:23], s%d offen offset:%d" % (vr(CP + 12 * r + 4 * t, 4), 44 + r, t * 1024))
    NT = 0 if ("now1pf" in EXP or "endtouch" in EXP) else 2
    def touches(n=NT):
        if n and "endtouch" not in EXP: a("s_barrier")
        for t in range(n):
            a("buffer_load_dword v%d, v28, s[20:23], s38 offen" % (24 + t))
            a("s_add_u32 s38, s38, %d" % (512 * 5504))
    if "w1late" not in EXP:
        w1loads(); touches()
    if "tlbpf" in EXP:
        STR = int(os.environ.get("TLBSTR", "16"))
        span = 64 << STR
        a("s_load_dwordx2 s[60:61], s[0:1], 16")
        a("s_load_dwordx2 s[62:63], s[0:1], 48")
        a("s_load_dwordx2 s[64:65], s[0:1], 72")
        a("s_sub_u32 s66, s35, 24")
        a("s_lshl_b32 s66, s66, 3")
        a("s_add_u32 s66, s66, s33")
        a("v_lshlrev_b32 v26, %d, v1" % STR)
        a("s_waitcnt lgkmcnt(0)")
        tasks = []
        for base, size in ((60, 512 * 1024), (62, 1376 * 4096), (64, 2048 * 1024), (12, WS_USED)):
            for off in range(0, size, span): tasks.append((base, size, off))
        assert len(tasks) <= 64, len(tasks)
        for t, (base, size, off) in enumerate(tasks):
            a("s_cmp_eq_u32 s66, %d" % t)
            a("s_cbranch_scc0 K1_tl%d" % t)
            srd(a, 56, base, size)
            a("s_mov_b32 s67, %d" % off)
            a("buffer_load_dword v23, v26, s[56:59], s67 offen")
            a("s_waitcnt vmcnt(0)") if False else None
            a.label("K1_tl%d" % t)
    a("s_waitcnt vmcnt(%d)" % (6 + NT if "w1late" not in EXP else 0))
    stamp(a, 2)
    if "w1late" in EXP:
        w1loads(); touches()
    for i in range(16):
        a("v_dot2c_f32_bf16 v%d, v%d, v8" % (10 + (i & 1), XR + i))
        a("v_dot2c_f32_bf16 v%d, v%d, v%d" % (12 + (i & 1), XR + i, GR + i))
    for i in range(16):
        a("v_lshlrev_b32 v%d, 16, v%d" % (D0 + 2 * i, XR + i))
        a("v_and_b32 v%d, 0xffff0000, v%d" % (D0 + 2 * i + 1, XR + i))
    a("v_add_f32 v10, v10, v11")
    a("v_add_f32 v12, v12, v13")
    def red(regs):
        for pat in ("quad_perm:[1,0,3,2]", "quad_perm:[2,3,0,1]", "row_half_mirror", "row_mirror"):
            a("s_nop 1")
            for r in regs:
                a("v_add_f32_dpp v%d, v%d, v%d %s row_mask:0xf bank_mask:0xf" % (r, r, r, pat))
    red([10, 12])
    a("v_mul_f32 v14, %s, v10" % f32(1.0 / 512))
    a("v_mov_b64 v[16:17], 0")
    a("v_mov_b64 v[18:19], 0")
    for i in range(16):
        p = vr(D0 + 2 * i, 2)
        a("v_pk_add_f32 %s, %s, v[14:15] op_sel_hi:[1,0] neg_lo:[0,1] neg_hi:[0,1]" % (p, p))
    for i in range(16):
        p = vr(D0 + 2 * i, 2); ac = vr(16 + 2 * (i & 1), 2)
        a("v_pk_fma_f32 %s, %s, %s, %s" % (ac, p, p, ac))
    a("v_add_f32 v16, v16, v17")
    a("v_add_f32 v18, v18, v19")
    a("v_add_f32 v16, v16, v18")
    red([16])
    a("v_mul_f32 v16, %s, v16" % f32(1.0 / 512))
    a("v_cvt_pk_bf16_f32 v16, v16, v14")
    a("v_cvt_pk_bf16_f32 v12, v12, v12")
    a("v_and_b32 v17, 0xffff0000, v16")
    a("v_lshlrev_b32 v16, 16, v16")
    a("v_lshlrev_b32 v12, 16, v12")
    a("v_add_f32 v16, %s, v16" % f32(1e-5))
    a("v_mul_f32 v12, %s, v12" % f32(-1.4426950408889634))
    a("v_cvt_pk_bf16_f32 v16, v16, v16")
    a("v_exp_f32 v12, v12")
    a("v_lshlrev_b32 v16, 16, v16")
    a("v_sqrt_f32 v16, v16")
    a("v_add_f32 v12, 1.0, v12")
    a("v_cvt_pk_bf16_f32 v16, v16, v16")
    a("v_rcp_f32 v12, v12")
    a("v_lshlrev_b32 v16, 16, v16")
    a("v_rcp_f32 v20, v16")
    a("v_sub_f32 v18, v14, v17")
    a("v_cvt_pk_bf16_f32 v12, v12, v12")
    a("v_mul_f32 v22, v18, v20")
    a("v_lshlrev_b32 v12, 16, v12")
    for t in range(4):
        for k in range(4):
            p = vr(D0 + 2 * (4 * t + k), 2)
            a("v_pk_fma_f32 %s, %s, v[20:21], v[22:23] op_sel_hi:[1,0,0]" % (p, p))
        for k in range(4):
            i = 4 * t + k
            a("v_cvt_pk_bf16_f32 v%d, v%d, v%d" % (XR + i, D0 + 2 * i, D0 + 2 * i + 1))
        a("ds_write_b128 v9, %s offset:%d" % (vr(XR + 4 * t, 4), t * 256))
    a("buffer_store_dword v12, v30, s[24:27], s42 offen")
    a("s_waitcnt lgkmcnt(0)")
    stamp(a, 3)
    a("s_barrier")
    for d in range(4):
        for rd in range(2):
            a("ds_read_b64_tr_b16 %s, v29 offset:%d" % (vr(32 + 4 * d + 2 * rd, 2), 32 * d + rd * RS))
    for d in range(4):
        a("s_waitcnt lgkmcnt(%d)" % (6 - 2 * d))
        a("buffer_store_dwordx4 %s, v7, s[24:27], s%d offen %s" % (vr(32 + 4 * d, 4), 52 + d, AUXPOL))
    a("s_waitcnt vmcnt(%d)" % (NT + 5))
    a("s_cmp_eq_u32 s33, 7")
    a("s_cbranch_scc0 K1_nx")
    a("s_add_u32 s41, s40, %d" % (10 * 196608))
    a("buffer_store_dwordx4 v[36:39], v7, s[24:27], s41 offen %s" % AUXPOL)
    a.label("K1_nx")
    a("s_mov_b32 s48, -1")
    a("s_mov_b32 s49, 0xffff")
    stamp(a, 4)
    for r in range(2):
        for t in range(3):
            if t == 2: a("s_mov_b64 exec, s[48:49]")
            a("s_add_u32 s47, s46, %d" % (t * 8 * 131072))
            a("buffer_store_dwordx4 %s, v31, s[24:27], s47 offen offset:%d %s" % (vr(CP + 12 * r + 4 * t, 4), r * 128, AUXPOL))
            if t == 2: a("s_mov_b64 exec, -1")
    if "endtouch" in EXP: touches(2)
    stamp_flush(a, 0, 12)
    a.label("K1_end")
    a("s_endpgm")
    return a.text(), 160

NRM = 6; MOFF = 33792; CNT = 33280
def lds_sync(a, idx, name, vt):
    a("v_mov_b32 v%d, %d" % (vt, CNT + 4 * idx))
    a("v_mov_b32 v%d, 1" % (vt + 1))
    a("s_mov_b64 exec, 1")
    a("ds_add_u32 v%d, v%d" % (vt, vt + 1))
    a("s_mov_b64 exec, -1")
    a.label(name)
    a("ds_read_b32 v%d, v%d" % (vt + 1, vt))
    a("s_waitcnt lgkmcnt(0)")
    a("v_readfirstlane_b32 s68, v%d" % (vt + 1))
    a("s_cmp_ge_u32 s68, 4")
    a("s_cbranch_scc0 %s" % name)
def gen_k2():
    a = Asm()
    a("s_cmp_ge_u32 s2, 256")
    a("s_cbranch_scc1 K2_end")
    stamps_init(a)
    a("s_load_dwordx4 s[8:11], s[0:1], 32")
    a("s_load_dwordx2 s[12:13], s[0:1], 88")
    a("s_load_dwordx2 s[4:5], s[0:1], 16")
    a("s_load_dwordx2 s[6:7], s[0:1], 48")
    a("v_and_b32 v1, 63, v0")
    a("v_lshrrev_b32 v2, 6, v0")
    a("s_and_b32 s34, s2, 7")
    a("v_readfirstlane_b32 s33, v2")
    a("s_lshr_b32 s35, s2, 3")
    if "scramble" in EXP:
        a("s_add_u32 s34, s34, s35")
        a("s_and_b32 s34, s34, 7")
    a("v_lshlrev_b32 v2, 4, v1")
    a("v_mov_b32 v3, %d" % CNT)
    a("v_mov_b64 v[4:5], 0")
    a("ds_write_b64 v3, v[4:5]")
    a("ds_write_b64 v3, v[4:5] offset:8")
    a("s_waitcnt lgkmcnt(0)")
    a("s_barrier")
    if "swaprole" in EXP:
        a("s_xor_b32 s33, s33, 4")
    a("s_cmp_lt_u32 s33, 4")
    a("s_cbranch_scc1 K2_attn")
    a("s_sub_u32 s33, s33, 4")
    a("s_cmp_eq_u32 s34, 7")
    a("s_cbranch_scc1 K2_d7")
    a("s_cmp_ge_u32 s35, 30")
    a("s_cbranch_scc1 K2_pref")
    a("s_cmp_lt_u32 s34, 4")
    a("s_cbranch_scc0 K2_d5")
    a("s_mul_i32 s36, s34, 5")
    a("s_mov_b32 s37, s35")
    a.label("K2_d6")
    a("s_mul_i32 s38, s37, 43")
    a("s_lshr_b32 s38, s38, 8")
    a("s_mul_i32 s39, s38, 6")
    a("s_sub_u32 s39, s37, s39")
    a("s_add_u32 s38, s38, s36")
    a("s_branch K2_dd")
    a.label("K2_d7")
    a("s_mov_b32 s36, 20")
    a("s_sub_u32 s37, s35, 20")
    a("s_cmp_ge_u32 s35, 20")
    a("s_cbranch_scc1 K2_d6")
    a.label("K2_d5")
    a("s_sub_u32 s36, s34, 4")
    a("s_mul_i32 s36, s36, 6")
    a("s_mul_i32 s38, s35, 52")
    a("s_lshr_b32 s38, s38, 8")
    a("s_mul_i32 s39, s38, 5")
    a("s_sub_u32 s39, s35, s39")
    a("s_add_u32 s39, s39, 6")
    a("s_add_u32 s38, s38, s36")
    a.label("K2_dd")

    a("v_lshrrev_b32 v3, 3, v1")
    a("v_lshlrev_b32 v153, 7, v3")
    a("v_mul_u32_u24 v3, 5504, v3")
    a("v_lshrrev_b32 v4, 4, v1")
    a("v_lshlrev_b32 v4, 1, v4")
    a("v_and_b32 v5, 7, v1")
    a("v_xor_b32 v4, v4, v5")
    a("v_lshl_add_u32 v3, v4, 4, v3")
    a("v_lshl_add_u32 v153, v4, 4, v153")
    a("s_mul_i32 s54, s33, %d" % (256 * 5504))
    a("s_lshl_b32 s40, s38, 7")
    a("s_add_u32 s54, s54, s40")
    a("s_lshl_b32 s53, s33, 15")
    a("s_lshl_b32 s40, s38, 17")
    a("s_add_u32 s53, s53, s40")
    a("s_add_u32 s53, s53, %d" % W1O)
    a("s_mul_i32 s55, s33, %d" % (16 * 3072))
    a("s_mul_i32 s40, s39, 196608")
    a("s_add_u32 s55, s55, s40")
    a("s_add_u32 s55, s55, %d" % HT)
    a("s_mul_i32 s40, s33, %d" % (NRM * 4096))
    a("s_add_u32 s40, s40, %d" % MOFF)
    a("s_waitcnt lgkmcnt(0)")
    srd(a, 16, 8, 2048 * 2752)
    srd(a, 24, 12, WS_USED)
    ACC = 8; AF = 56; BF = 160
    def loads(b):
        r = []
        for q in range(4):
            r.append("s_add_u32 m0, s40, %d" % (b * 4096 + q * 1024))
            if q < 2:
                r.append("s_add_u32 s50, s54, %d" % (q * 8 * 5504))
                r.append("buffer_load_dwordx4 v3, s[16:19], s50 offen lds")
            else:
                r.append("s_add_u32 s50, s53, %d" % ((q - 2) * 1024))
                r.append("buffer_load_dwordx4 v153, s[24:27], s50 offen lds")
        for i in range(3):
            r.append("buffer_load_dwordx4 %s, v2, s[24:27], s55 offen offset:%d" % (vr(BF + 12 * b + 4 * i, 4), i * 1024))
        r.append("s_add_u32 s54, s54, %d" % (16 * 5504))
        r.append("s_add_u32 s53, s53, 2048")
        r.append("s_add_u32 s55, s55, 3072")
        return r
    def trreads(b):
        return ["ds_read_b64_tr_b16 %s, v%d offset:%d" % (vr(AF + 16 * (b & 1) + 4 * e + 2 * rd, 2), 140 + e, b * 4096 + rd * 2048) for e in range(4) for rd in range(2)]
    for b in range(NRM - 1):
        for l in loads(b): a(l)
    stamp(a, 1)
    srd(a, 28, 10, 2752)
    a("v_bfe_u32 v4, v1, 2, 2")
    a("v_lshrrev_b32 v5, 4, v1")
    a("v_lshl_add_u32 v4, v5, 2, v4")
    a("v_bfe_u32 v5, v4, 1, 2")
    a("v_lshlrev_b32 v5, 5, v5")
    a("v_lshl_add_u32 v5, v4, 7, v5")
    a("v_and_b32 v4, 3, v1")
    a("v_lshl_add_u32 v5, v4, 3, v5")
    a("v_add_u32 v140, s40, v5")
    for e in range(1, 4): a("v_xor_b32 v%d, %d, v140" % (140 + e, e << 5))
    for i in range(0, 48, 2): a("v_mov_b64 %s, 0" % vr(ACC + i, 2))
    a("v_lshrrev_b32 v4, 4, v1")
    a("v_lshlrev_b32 v5, 3, v4")
    a("s_lshl_b32 s44, s38, 7")
    a("s_lshl_b32 s45, s33, 5")
    a("s_add_u32 s44, s44, s45")
    a("buffer_load_dwordx2 v[146:147], v5, s[28:31], s44 offen")
    a("v_and_b32 v6, 15, v1")
    a("v_mul_u32_u24 v144, 272, v6")
    a("v_lshl_add_u32 v145, v4, 4, v144")
    a("s_lshl_b32 s45, s33, 6")
    a("v_add_u32 v145, s45, v145")
    a("v_lshl_add_u32 v144, v4, 4, v144")
    a("s_mul_i32 s45, s33, 13056")
    a("s_add_u32 s45, s45, %d" % MOFF)
    a("v_add_u32 v144, s45, v144")
    a("v_add_u32 v145, %d, v145" % MOFF)
    a("s_mul_i32 s45, s39, 48")
    a("s_min_u32 s45, s45, 464")
    a("v_add_u32 v6, s45, v6")
    a("v_lshrrev_b32 v7, 5, v1")
    a("v_bfe_u32 v5, v1, 4, 1")
    a("v_lshlrev_b32 v5, 3, v5")
    a("v_lshl_add_u32 v5, v7, 9, v5")
    a("s_mov_b32 s45, 176128")
    for dt in range(3):
        a("v_add_u32 v7, %d, v6" % (16 * dt))
        a("v_lshrrev_b32 v148, 6, v7")
        a("v_mul_lo_u32 v148, v148, s45")
        a("v_bfe_u32 v149, v7, 5, 1")
        a("v_lshl_add_u32 v148, v149, 10, v148")
        a("v_and_b32 v149, 31, v7")
        a("v_lshl_add_u32 v148, v149, 4, v148")
        a("v_add_u32 v%d, v148, v5" % (150 + dt))
    a("s_lshl_b32 s47, s38, 2")
    a("s_add_u32 s47, s47, s33")
    a("s_lshl_b32 s46, s47, 11")
    a("s_add_u32 s46, s46, %d" % UF)
    a("s_mov_b32 s48, %s" % f32(GC2))
    a("s_mov_b32 s49, %s" % f32(GC1))
    a("s_mov_b32 s44, 0")
    a("s_waitcnt vmcnt(%d)" % (7 * (NRM - 2) + 1))
    if PRIO: a("s_setprio %s" % PRIO)
    for r in trreads(0): a(r)
    def step(b, ld, wait, tr=True, skip=None):
        mf = []
        for ai in range(4):
            for bi in range(3):
                acc = vr(ACC + (ai * 3 + bi) * 4, 4)
                mf.append("v_mfma_f32_16x16x32_bf16 %s, %s, %s, %s" % (acc, vr(AF + 16 * (b & 1) + 4 * ai, 4), vr(BF + 12 * b + 4 * bi, 4), acc))
        if "ldfirst" in EXP:
            if skip:
                a("s_cmp_eq_u32 s44, 1")
                a("s_cbranch_scc1 %s" % skip)
            for l in ld: a(l)
            if ld and not skip: a("s_waitcnt vmcnt(%d)" % (wait + 7))
            elif skip:
                a("s_waitcnt vmcnt(%d)" % (wait + 7))
                a.label(skip)
                a("s_waitcnt vmcnt(%d)" % (wait + 7)) if False else None
                a("s_nop 0")
            if tr:
                if not ld: a("s_waitcnt vmcnt(%d)" % wait)
                if skip:
                    a("s_cmp_eq_u32 s44, 1")
                    a("s_cbranch_scc0 %s_b" % skip)
                    a("s_waitcnt vmcnt(%d)" % wait)
                    a.label(skip + "_b")
                for r in trreads((b + 1) % NRM): a(r)
                a("s_waitcnt lgkmcnt(8)")
            else:
                a("s_waitcnt lgkmcnt(0)")
            for m in mf: a(m)
            return
        if tr:
            a("s_waitcnt vmcnt(%d)" % wait)
            for r in trreads((b + 1) % NRM): a(r)
            a("s_waitcnt lgkmcnt(8)")
        else:
            a("s_waitcnt lgkmcnt(0)")
        if skip:
            for m in mf[:4]: a(m)
            a("s_cmp_eq_u32 s44, 1")
            a("s_cbranch_scc1 %s" % skip)
            for l in ld: a(l)
            a.label(skip)
            for m in mf[4:]: a(m)
            return
        n = 0
        for m in mf:
            a(m)
            for _ in range(2):
                if n < len(ld): a(ld[n]); n += 1
    W = 7 * (NRM - 3)
    a.label("K2_mloop")
    for b in range(NRM): step(b, loads((b + NRM - 1) % NRM), W, skip="K2_msk" if b == NRM - 1 else None)
    a("s_add_u32 s44, s44, 1")
    a("s_cmp_lt_u32 s44, 2")
    a("s_cbranch_scc1 K2_mloop")
    step(0, [], 14)
    step(1, [], 7)
    step(2, [], 0)
    step(3, [], 0, tr=False)
    stamp(a, 2)
    if "nopref" not in EXP and "notailpf" not in EXP:
        a("s_mul_i32 s44, s38, 11")
        a("s_add_u32 s44, s44, s39")
        a("s_mul_i32 s45, s33, 242")
        a("s_add_u32 s44, s44, s45")
        a("s_cmp_lt_u32 s44, %d" % (3 * (232 - PFSPLIT)))
        a("s_cbranch_scc0 K2_np")
        a("s_mul_i32 s45, s44, 683")
        a("s_lshr_b32 s45, s45, 11")
        a("s_mul_i32 s50, s45, 3")
        a("s_sub_u32 s50, s44, s50")
        a("s_mul_i32 s50, s50, 232")
        a("s_add_u32 s50, s50, s45")
        a("s_add_u32 s50, s50, %d" % PFSPLIT)
        a("s_lshl_b32 s50, s50, 13")
        srd(a, 16, 6, 1376 * 4096)
        a("v_lshlrev_b32 v154, 7, v1")
        a("buffer_load_dword v155, v154, s[16:19], s50 offen")
        a.label("K2_np")
    lds_sync(a, 1, "K2_sy1", 4)
    for ai in range(4):
        for bi in range(3):
            a("ds_write_b128 v144, %s offset:%d" % (vr(ACC + (ai * 3 + bi) * 4, 4), bi * 16 * 272 + ai * 64))
    for j in range(2):
        a("v_lshlrev_b32 v%d, 16, v%d" % (136 + 2 * j, 146 + j))
        a("v_and_b32 v%d, 0xffff0000, v%d" % (137 + 2 * j, 146 + j))
    a("s_waitcnt lgkmcnt(0)")
    lds_sync(a, 2, "K2_sy2", 4)
    a("s_cmp_ge_u32 s47, 86")
    a("s_cbranch_scc1 K2_mdone")
    R = 56
    for k in range(3):
        for wv in range(4):
            a("ds_read_b128 %s, v145 offset:%d" % (vr(R + 16 * k + 4 * wv, 4), wv * 13056 + k * 16 * 272))
    for k in range(3):
        r = R + 16 * k
        a("s_waitcnt lgkmcnt(%d)" % (8 - 4 * k))
        a("v_pk_add_f32 %s, %s, %s" % (vr(r, 2), vr(r, 2), vr(r + 4, 2)))
        a("v_pk_add_f32 %s, %s, %s" % (vr(r + 2, 2), vr(r + 2, 2), vr(r + 6, 2)))
        a("v_pk_add_f32 %s, %s, %s" % (vr(r + 8, 2), vr(r + 8, 2), vr(r + 12, 2)))
        a("v_pk_add_f32 %s, %s, %s" % (vr(r + 10, 2), vr(r + 10, 2), vr(r + 14, 2)))
        a("v_pk_add_f32 %s, %s, %s" % (vr(r, 2), vr(r, 2), vr(136, 2)))
        a("v_pk_add_f32 %s, %s, %s" % (vr(r + 2, 2), vr(r + 2, 2), vr(138, 2)))
        a("v_pk_add_f32 %s, %s, %s" % (vr(r, 2), vr(r, 2), vr(r + 8, 2)))
        a("v_pk_add_f32 %s, %s, %s" % (vr(r + 2, 2), vr(r + 2, 2), vr(r + 10, 2)))
        a("v_pk_mul_f32 %s, %s, %s" % (vr(r + 8, 2), vr(r, 2), vr(r, 2)))
        a("v_pk_mul_f32 %s, %s, %s" % (vr(r + 10, 2), vr(r + 2, 2), vr(r + 2, 2)))
        for j in range(4): a("v_mov_b32 v%d, s49" % (r + 12 + j))
        for j in range(4): a("v_fmac_f32 v%d, s48, v%d" % (r + 12 + j, r + 8 + j))
        a("v_pk_mul_f32 %s, %s, %s" % (vr(r + 8, 2), vr(r, 2), vr(r + 12, 2)))
        a("v_pk_mul_f32 %s, %s, %s" % (vr(r + 10, 2), vr(r + 2, 2), vr(r + 14, 2)))
        for j in range(4): a("v_exp_f32 v%d, v%d" % (r + 8 + j, r + 8 + j))
        for j in range(4): a("v_add_f32 v%d, 1.0, v%d" % (r + 8 + j, r + 8 + j))
        for j in range(4): a("v_rcp_f32 v%d, v%d" % (r + 8 + j, r + 8 + j))
        a("s_nop 0")
        a("v_pk_mul_f32 %s, %s, %s" % (vr(r, 2), vr(r, 2), vr(r + 8, 2)))
        a("v_pk_mul_f32 %s, %s, %s" % (vr(r + 2, 2), vr(r + 2, 2), vr(r + 10, 2)))
        a("v_cvt_pk_bf16_f32 v%d, v%d, v%d" % (r + 4, r, r + 1))
        a("v_cvt_pk_bf16_f32 v%d, v%d, v%d" % (r + 5, r + 2, r + 3))
        a("buffer_store_dwordx2 %s, v%d, s[24:27], s46 offen" % (vr(r + 4, 2), 150 + k))
    a.label("K2_mdone")
    stamp(a, 3)
    stamp_flush(a, 1, 12)
    a("s_endpgm")
    a.label("K2_pref")
    if "nopref" in EXP: a("s_endpgm")
    a("s_lshl_b32 s36, s34, 1")
    a("s_add_u32 s36, s36, s35")
    a("s_sub_u32 s36, s36, 30")
    a("s_lshl_b32 s36, s36, 2")
    a("s_add_u32 s36, s36, s33")
    a("v_lshlrev_b32 v4, 7, v1")
    a("s_waitcnt lgkmcnt(0)")
    srd(a, 16, 6, 1376 * 4096)
    srd(a, 20, 4, 512 * 1024)
    if "nocolpf" not in EXP:
        a("s_and_b32 s40, s36, 7")
        a("v_lshlrev_b32 v5, 10, v1")
        a("s_lshl_b32 s41, s40, 16")
        a("s_add_u32 s41, s41, 384")
        a("buffer_load_dword v9, v5, s[20:23], s41 offen")
        a("s_and_b32 s41, s34, 1")
        a("s_cmp_eq_u32 s41, 0")
        a("s_cbranch_scc0 K2_pf1")
        a("v_lshlrev_b32 v5, 12, v1")
        a("s_lshl_b32 s41, s40, 18")
        a("s_lshl_b32 s42, s34, 9")
        a("s_add_u32 s41, s41, s42")
        a("s_add_u32 s41, s41, 384")
        for u in range(3):
            a("buffer_load_dword v9, v5, s[16:19], s41 offen")
            a("s_add_u32 s41, s41, %d" % (8 << 18))
    a.label("K2_pf1")
    a("s_cmp_lt_u32 s36, 64")
    a("s_cbranch_scc0 K2_pf2")
    a("s_lshl_b32 s39, s36, 13")
    a("buffer_load_dword v8, v4, s[20:23], s39 offen")
    a("s_add_u32 s36, s36, 56")
    a("s_branch K2_pf1")
    a.label("K2_pf2")
    a("s_sub_u32 s37, s36, 64")
    a("s_mul_i32 s38, s37, 171")
    a("s_lshr_b32 s38, s38, 9")
    a("s_mul_i32 s39, s38, 3")
    a("s_sub_u32 s39, s37, s39")
    a("s_mul_i32 s39, s39, 232")
    a("s_add_u32 s39, s39, s38")
    a("s_lshl_b32 s39, s39, 13")
    a("buffer_load_dword v8, v4, s[16:19], s39 offen")
    a("s_add_u32 s36, s36, 56")
    a("s_cmp_lt_u32 s36, %d" % (64 + 3 * PFSPLIT))
    a("s_cbranch_scc1 K2_pf2")
    stamp_flush(a, 1, 12)
    a("s_endpgm")
    a.label("K2_attn")
    if "noattn" in EXP: a("s_endpgm")
    VS = 1056; VOFF = 16384
    if "swaprole" in EXP: a("s_setprio 3")
    a("s_lshl_b32 s36, s34, 2")
    a("s_and_b32 s37, s35, 3")
    a("s_add_u32 s36, s36, s37")
    a("s_lshr_b32 s37, s35, 2")
    a("s_lshl_b32 s38, s36, 16")
    a("s_add_u32 s39, s38, %d" % KF)
    a("s_add_u32 s40, s38, %d" % VF)
    a("s_lshl_b32 s41, s37, 3")
    a("s_add_u32 s41, s41, s33")
    a("s_lshl_b32 s42, s41, 10")
    a("s_add_u32 s42, s42, s38")
    a("s_add_u32 s43, s42, 4096")
    a("s_lshl_b32 s44, s37, 3")
    a("s_lshl_b32 s45, s33, 2")
    a("s_add_u32 s44, s44, s45")
    a("s_sub_u32 s44, s44, 8")
    a("v_lshrrev_b32 v3, 5, v1")
    a("v_lshlrev_b32 v200, 9, v3")
    a("s_lshl_b32 s45, s33, 12")
    a("s_mul_i32 s46, s33, %d" % (4 * VS))
    a("s_add_u32 s46, s46, %d" % VOFF)
    a("v_mov_b32 v203, s46")
    a("s_lshl_b32 s50, s44, 10")
    a("s_cmp_lt_i32 s44, 0")
    a("s_cselect_b64 s[48:49], -1, 0")
    a("s_cselect_b32 s51, 0, s50")
    a("s_cselect_b32 s52, 0, 1024")
    a("s_cselect_b32 s50, %d, s50" % BIG)
    a("s_cselect_b32 s56, 0, 0x3f803f80")
    a("v_cndmask_b32 v202, v2, v200, s[48:49]")
    a("v_mov_b32 v204, s56")
    a("v_mov_b32 v205, s56")
    a("v_mov_b64 v[206:207], 0")
    a("s_waitcnt lgkmcnt(0)")
    srd_off(a, 16, 12, 39, 65536)
    srd_off(a, 20, 12, 40, 65536)
    srd(a, 24, 12, WS_USED)
    a("buffer_load_dwordx4 v[4:7], v2, s[24:27], s42 offen")
    for u in range(4):
        a("s_add_u32 m0, s45, %d" % (u * 1024))
        a("s_nop 0")
        a("buffer_load_dwordx4 v202, s[16:19], s51 offen lds")
        a("s_add_u32 m0, s46, %d" % (u * VS))
        a("s_add_u32 s51, s51, s52")
        a("buffer_load_dwordx4 v2, s[20:23], s50 offen lds")
        a("s_add_u32 s50, s50, 1024")
        a("ds_write_b64 v203, v[204:205] offset:%d" % (u * VS + 1024))
        a("ds_write_b64 v203, v[204:205] offset:%d" % (u * VS + 1032))
        if "onesall" not in EXP:
            a("ds_write_b64 v203, v[206:207] offset:%d" % (u * VS + 1040))
            a("ds_write_b64 v203, v[206:207] offset:%d" % (u * VS + 1048))
    a("buffer_load_dwordx4 v[208:211], v2, s[24:27], s43 offen")
    if "swaprole" in EXP: a("s_setprio 0")
    stamp(a, 1)
    KB = 8; VB = 20; PB = 36; SB = 48; COLD = 96; CDIAG = 112; CN = 128; OA = 144; C2O = 160; C2D = 176
    a("v_and_b32 v200, 31, v1")
    a("v_lshlrev_b32 v201, 2, v3")
    a("v_sub_u32 v200, v200, v201")
    a("v_mov_b32 v201, %s" % f32(NEGBIG))
    a("v_mov_b32 v202, 0")
    for i0 in range(0, 16, 4):
        for i in range(i0, i0 + 4):
            a("v_cmp_le_i32 s[%d:%d], %d, v200" % (56 + 2 * (i - i0), 57 + 2 * (i - i0), 8 * (i // 4) + i % 4))
        for i in range(i0, i0 + 4):
            m = "s[%d:%d]" % (56 + 2 * (i - i0), 57 + 2 * (i - i0))
            a("v_cndmask_b32 v%d, v201, v202, %s" % (CDIAG + i, m))
            a("v_cndmask_b32 v%d, v202, v201, %s" % (COLD + i, m))
    a("s_lshl_b32 s45, s33, 10")
    a("v_add_u32 v200, s45, v2")
    a("s_mul_i32 s45, s33, %d" % VS)
    a("s_add_u32 s45, s45, %d" % VOFF)
    a("v_and_b32 v204, 15, v1")
    a("v_lshlrev_b32 v204, 4, v204")
    a("v_lshl_add_u32 v204, v3, 8, v204")
    a("v_add_u32 v204, s45, v204")
    a("v_add_u32 v205, 512, v204")
    a("v_bfe_u32 v206, v1, 4, 1")
    a("v_cmp_eq_u32 vcc, 1, v206")
    a("s_add_u32 s45, s45, 1024")
    a("v_mov_b32 v206, s45")
    if "onesall" not in EXP:
        a("v_and_b32 v207, 11, v1")
        a("v_cmp_ne_u32 s[56:57], 0, v207")
        a("v_add_u32 v207, 16, v206")
        a("s_nop 0")
        a("v_cndmask_b32 v206, v206, v207, s[56:57]")
    a("s_lshr_b32 s45, s41, 1")
    a("v_cndmask_b32 v204, v204, v206, vcc")
    a("v_cndmask_b32 v205, v205, v206, vcc")
    a("s_lshl_b32 s45, s45, 16")
    a("s_lshl_b32 s46, s36, 11")
    a("s_add_u32 s45, s45, s46")
    a("s_and_b32 s46, s41, 1")
    a("s_lshl_b32 s46, s46, 10")
    a("s_add_u32 s45, s45, s46")
    a("s_add_u32 s45, s45, %d" % OF)
    a("s_mov_b32 s47, 0")
    a("s_waitcnt vmcnt(0) lgkmcnt(0)")
    lds_sync(a, 0, "K2_sy0", 202)
    stamp(a, 2)
    if "attnloadonly" in EXP: a("s_endpgm")
    a.label("K2_aloop")
    kread = lambda p: "ds_read_b128 %s, v200 offset:%d" % (vr(KB + 4 * (p % 3), 4), p * 1024)
    S = lambda i: SB + 16 * i
    def maxops(sb):
        for i in range(0, 16, 2):
            m = 202 + ((i // 2) & 1)
            a("v_max3_f32 v%d, v%d, v%d, v%d" % (m, m, sb + i, sb + i + 1))
    for p in range(3): a(kread(p))
    a("v_mov_b32 v202, %s" % f32(NEGBIG))
    a("v_mov_b32 v203, %s" % f32(NEGBIG))
    for i in range(0, 16, 2): a("v_mov_b64 %s, 0" % vr(OA + i, 2))
    for p in range(9):
        a("s_waitcnt lgkmcnt(%d)" % min(2, 8 - p))
        c = vr(COLD, 16) if p == 0 else (vr(CDIAG, 16) if p == 8 else "0")
        a("v_mfma_f32_32x32x16_bf16 %s, %s, v[4:7], %s" % (vr(S(p % 3), 16), vr(KB + 4 * (p % 3), 4), c))
        if p + 3 < 9: a(kread(p + 3))
        if p >= 1:
            a("s_nop 7" if p == 1 else "s_nop 1")
            maxops(S((p - 1) % 3))
    for p in range(3): a(kread(p))
    a("s_nop 7")
    maxops(S(8 % 3))
    a("v_max_f32 v202, v202, v203")
    a("v_mov_b32 v203, v202")
    a("s_nop 1")
    a("v_permlane32_swap_b32 v202, v203")
    a("v_max_f32 v202, v202, v203")
    for i in range(0, 16, 2):
        a("v_pk_add_f32 %s, %s, v[202:203] op_sel_hi:[1,0] neg_lo:[0,1] neg_hi:[0,1]" % (vr(C2O + i, 2), vr(COLD + i, 2)))
    a("v_sub_f32 v%d, 0, v202" % CN)
    a("v_sub_f32 v%d, 0, v202" % (CN + 1))
    for i in range(2, 16, 2): a("v_mov_b64 %s, %s" % (vr(CN + i, 2), vr(CN, 2)))
    for i in range(0, 16, 2):
        a("v_pk_add_f32 %s, %s, v[202:203] op_sel_hi:[1,0] neg_lo:[0,1] neg_hi:[0,1]" % (vr(C2D + i, 2), vr(CDIAG + i, 2)))
    def vread(p):
        return ["ds_read_b128 %s, v%d offset:%d" % (vr(VB + 8 * (p % 2) + 4 * i, 4), 204 + i, p * VS) for i in range(2)]
    def smfma(p):
        c = vr(C2O, 16) if p == 0 else (vr(C2D, 16) if p == 8 else vr(CN, 16))
        a("v_mfma_f32_32x32x16_bf16 %s, %s, v[4:7], %s" % (vr(S(p % 2), 16), vr(KB + 4 * (p % 3), 4), c))
    for r in vread(0): a(r)
    a("s_waitcnt lgkmcnt(4)")
    smfma(0)
    a(kread(3))
    for p in range(9):
        if p + 1 < 9:
            a("s_waitcnt lgkmcnt(%d)" % P2_WAIT_K[p])
            smfma(p + 1)
            for r in vread(p + 1): a(r)
            if p + 4 < 9: a(kread(p + 4))
            if p == 0: a("s_nop 7")
        sb = S(p % 2)
        if "noexp" not in EXP:
            for i in range(16): a("v_exp_f32 v%d, v%d" % (sb + i, sb + i))
        else: a("s_nop 7")
        for i in range(8): a("v_cvt_pk_bf16_f32 v%d, v%d, v%d" % (PB + i, sb + 2 * i, sb + 2 * i + 1))
        a("s_waitcnt lgkmcnt(%d)" % P2_WAIT_V[p])
        a("s_nop 0")
        for i in range(2):
            a("v_mfma_f32_32x32x16_bf16 %s, %s, %s, %s" % (vr(OA, 16), vr(VB + 8 * (p % 2) + 4 * i, 4), vr(PB + 4 * i, 4), vr(OA, 16)))
    a("v_add_u32 v200, 4096, v200")
    a("v_add_u32 v204, %d, v204" % (4 * VS))
    a("v_add_u32 v205, %d, v205" % (4 * VS))
    a("v_mov_b64 v[4:5], v[208:209]")
    a("v_mov_b64 v[6:7], v[210:211]")
    a("s_nop 7")
    a("v_rcp_f32 v202, v%d" % (OA + 8))
    a("s_nop 0")
    for i in range(0, 8, 2): a("v_pk_mul_f32 %s, %s, v[202:203] op_sel_hi:[1,0]" % (vr(OA + i, 2), vr(OA + i, 2)))
    for i in range(4): a("v_cvt_pk_bf16_f32 v%d, v%d, v%d" % (212 + i, OA + 2 * i, OA + 2 * i + 1))
    a("buffer_store_dwordx4 v[212:215], v2, s[24:27], s45 offen %s" % K2POL)
    a("s_add_u32 s45, s45, %d" % (2 * 65536))
    a("s_add_u32 s47, s47, 1")
    if STAMPS:
        a("s_cmp_eq_u32 s47, 1")
        a("s_cbranch_scc0 K2_st4")
        stamp(a, 3)
        a.label("K2_st4")
    a("s_cmp_lt_u32 s47, 2")
    a("s_cbranch_scc1 K2_aloop")
    stamp(a, 4)
    a("s_cmp_eq_u32 s33, 3")
    a("s_cbranch_scc0 K2_ncp")
    code_prefetch(a, "k2", "k3_kernel", 1, 8, 9)
    a.label("K2_ncp")
    if "l2pf3" in EXP:
        a("s_lshl_b32 s36, s35, 2")
        a("s_add_u32 s36, s36, s33")
        a("v_lshrrev_b32 v8, 3, v1")
        a("v_lshlrev_b32 v8, 12, v8")
        a("v_and_b32 v9, 7, v1")
        a("v_lshl_add_u32 v8, v9, 7, v8")
        a("v_lshrrev_b32 v9, 2, v1")
        a("v_lshlrev_b32 v9, 10, v9")
        a("v_and_b32 v10, 3, v1")
        a("v_lshl_add_u32 v9, v10, 7, v9")
        a("s_lshr_b32 s37, s34, 1")
        a("s_lshl_b32 s37, s37, 10")
        a("s_and_b32 s38, s34, 1")
        a("s_lshl_b32 s38, s38, 9")
        srd(a, 16, 6, 1376 * 4096)
        srd(a, 20, 4, 512 * 1024)
        a("s_lshl_b32 s39, s36, 15")
        a("s_add_u32 s39, s39, s37")
        a("buffer_load_dword v11, v8, s[16:19], s39 offen")
        a("s_add_u32 s36, s36, 128")
        a("s_cmp_lt_u32 s36, 172")
        a("s_cbranch_scc0 K2_l2a")
        a("s_add_u32 s39, s39, %d" % (128 << 15))
        a("buffer_load_dword v12, v8, s[16:19], s39 offen")
        a("s_branch K2_l2b")
        a.label("K2_l2a")
        a("s_cmp_lt_u32 s36, 204")
        a("s_cbranch_scc0 K2_l2b")
        a("s_sub_u32 s39, s36, 172")
        a("s_lshl_b32 s39, s39, 14")
        a("s_add_u32 s39, s39, s38")
        a("buffer_load_dword v12, v9, s[20:23], s39 offen")
        a.label("K2_l2b")
    stamp_flush(a, 1, 12)
    a.label("K2_end")
    a("s_endpgm")
    return a.text(), 232
PFSPLIT = int(os.environ.get("PFSPLIT", "72"))

def _p2_waits():
    q = ["K0", "K1", "K2", "V0a", "V0b", "K3"]
    wk, wv = [], []
    def need(name): return len(q) - 1 - q.index(name)
    for p in range(9):
        if p + 1 < 9:
            wk.append(need("K%d" % (p + 1)))
            q.extend(["V%da" % (p + 1), "V%db" % (p + 1)])
            if p + 4 < 9: q.append("K%d" % (p + 4))
        wv.append(need("V%db" % p))
    return wk, wv
P2_WAIT_K, P2_WAIT_V = _p2_waits()

def gen_k3():
    a = Asm()
    a("s_cmp_ge_u32 s2, 256")
    a("s_cbranch_scc1 K3_end")
    stamps_init(a)
    a("s_load_dwordx2 s[4:5], s[0:1], 16")
    a("s_load_dwordx4 s[8:11], s[0:1], 48")
    a("s_load_dwordx2 s[14:15], s[0:1], 72")
    a("s_load_dwordx2 s[12:13], s[0:1], 88")
    a("v_and_b32 v1, 63, v0")
    a("v_lshrrev_b32 v2, 6, v0")
    a("s_and_b32 s34, s2, 7")
    a("v_readfirstlane_b32 s33, v2")
    a("s_lshr_b32 s35, s2, 3")
    if "scramble" in EXP:
        a("s_add_u32 s34, s34, s35")
        a("s_and_b32 s34, s34, 7")
    a("v_lshlrev_b32 v2, 4, v1")
    if "k3part0" in EXP:
        a("s_lshr_b32 s36, s34, 1")
        a("s_lshl_b32 s36, s36, 3")
        a("s_lshr_b32 s37, s35, 2")
        a("s_add_u32 s36, s36, s37")
        a("s_and_b32 s37, s34, 1")
        a("s_lshl_b32 s37, s37, 2")
        a("s_and_b32 s38, s35, 3")
        a("s_add_u32 s37, s37, s38")
    else:
        a("s_lshl_b32 s36, s34, 2")
        a("s_lshr_b32 s37, s35, 3")
        a("s_add_u32 s36, s36, s37")
        a("s_and_b32 s37, s35, 7")
    a("v_lshrrev_b32 v3, 3, v1")
    a("v_bfe_u32 v4, v1, 4, 1")
    a("v_lshlrev_b32 v4, 2, v4")
    a("v_and_b32 v5, 7, v1")
    a("v_xor_b32 v4, v4, v5")
    a("v_lshlrev_b32 v4, 4, v4")
    a("s_lshl_b32 s40, s33, 14")
    ACC = 16; BUF = 80; WF = 144
    NR = 8
    a("s_cmp_eq_u32 s33, 0")
    a("s_cbranch_scc0 K3_mlp2")
    for role in (0, 1):
        if role == 0:
            a("v_lshl_add_u32 v8, v3, 10, v4")
            RDS = 1024; RSTR = 1024; HFSH = 9
            a("s_lshl_b32 s41, s37, 7")
            a("s_lshl_b32 s42, s36, 16")
            a("s_add_u32 s42, s42, %d" % OF)
            a("s_sub_u32 s46, %d, s41" % (512 * 1024))
            a("s_mov_b32 s44, 32")
            if "k3prio" in EXP: a("s_setprio 1")
            a("s_waitcnt lgkmcnt(0)")
            srd_off(a, 16, 4, 41, "s46")
            srd_off(a, 20, 12, 42, 32 * 2048)
        else:
            a.label("K3_mlp2")
            a("v_lshl_add_u32 v8, v3, 12, v4")
            RDS = 512; RSTR = 4096; HFSH = 10
            a("s_sub_u32 s43, s33, 1")
            a("s_mul_i32 s43, s43, 29")
            a("s_cmp_eq_u32 s33, 3")
            a("s_cselect_b32 s44, 28, 29")
            a("s_lshl_b32 s41, s43, 16")
            a("s_lshl_b32 s45, s36, 7")
            a("s_add_u32 s41, s41, s45")
            a("s_mul_i32 s42, s37, 176128")
            a("s_lshl_b32 s46, s43, 11")
            a("s_add_u32 s42, s42, s46")
            a("s_add_u32 s42, s42, %d" % UF)
            a("s_lshl_b32 s46, s44, 16")
            a("s_sub_u32 s46, s46, s45")
            a("s_lshl_b32 s47, s44, 11")
            a("s_waitcnt lgkmcnt(0)")
            srd_off(a, 16, 8, 41, "s46")
            srd_off(a, 20, 12, 42, "s47")
        def loads(b):
            r = []
            r.append("s_add_u32 m0, s40, %d" % (b * 2048))
            r.append("s_add_u32 s50, s48, %d" % (8 * RSTR))
            r.append("buffer_load_dwordx4 v8, s[16:19], s48 offen lds")
            r.append("s_add_u32 m0, s40, %d" % (b * 2048 + 1024))
            r.append("buffer_load_dwordx4 %s, v2, s[20:23], s49 offen" % vr(BUF + 8 * b, 4))
            r.append("buffer_load_dwordx4 v8, s[16:19], s50 offen lds")
            r.append("buffer_load_dwordx4 %s, v2, s[20:23], s49 offen offset:1024" % vr(BUF + 8 * b + 4, 4))
            r.append("s_add_u32 s48, s48, %d" % (16 * RSTR))
            r.append("s_add_u32 s49, s49, 2048")
            if "norot3" not in EXP:
                r.append("s_cmp_eq_u32 s49, s57")
                r.append("s_cselect_b32 s48, 0, s48")
                r.append("s_cselect_b32 s49, 0, s49")
            return r
        def trreads(b):
            r = []
            if "k3notr" in EXP: return ["s_nop 0"]
            for mt in range(2):
                for rd in range(2):
                    r.append("ds_read_b64_tr_b16 %s, v%d offset:%d" % (vr(WF + 8 * (b & 1) + 4 * mt + 2 * rd, 2), 10 + mt, b * 2048 + rd * RDS))
            return r
        if "norot3" in EXP:
            a("s_mov_b32 s48, 0")
            a("s_mov_b32 s49, 0")
        else:
            a("s_lshr_b32 s53, s35, 2")
            a("s_lshl_b32 s53, s53, 2")
            a("s_and_b32 s54, s35, 3")
            a("s_mul_i32 s54, s54, 7")
            a("s_add_u32 s53, s53, s54")
            a("s_sub_u32 s54, s53, s44")
            a("s_cmp_ge_u32 s53, s44")
            a("s_cselect_b32 s53, s54, s53")
            a("s_lshl_b32 s48, s53, %d" % ((16 * RSTR).bit_length() - 1))
            a("s_lshl_b32 s49, s53, 11")
            a("s_lshl_b32 s57, s44, 11")
        for b in range(NR - 1):
            for l in loads(b): a(l)
        stamp(a, 1)
        a("v_bfe_u32 v6, v1, 2, 2")
        a("v_lshlrev_b32 v6, 7, v6")
        a("v_bfe_u32 v7, v1, 3, 1")
        a("v_lshl_add_u32 v6, v7, 6, v6")
        a("v_bfe_u32 v7, v1, 4, 1")
        a("v_lshl_add_u32 v6, v7, 5, v6")
        a("v_and_b32 v7, 3, v1")
        a("v_lshl_add_u32 v6, v7, 3, v6")
        a("v_add_u32 v6, s40, v6")
        a("v_lshrrev_b32 v7, 5, v1")
        a("v_lshl_add_u32 v10, v7, %d, v6" % HFSH)
        a("v_xor_b32 v11, 64, v10")
        for i in range(0, 64, 2): a("v_mov_b64 %s, 0" % vr(ACC + i, 2))
        a("s_sub_u32 s51, s44, 2")
        a("s_waitcnt vmcnt(%d)" % (4 * (NR - 2)))
        for r in trreads(0): a(r)
        L = "K3_loop%d" % role
        a.label(L)
        for b in range(NR):
            nb = (b + 1) % NR
            a("s_cmp_lt_i32 s51, 5")
            a("s_cbranch_scc1 %s_t%d" % (L, b))
            a("s_waitcnt vmcnt(%d)" % (4 * (NR - 3)))
            a.label("%s_r%d" % (L, b))
            for r in trreads(nb): a(r)
            a("s_waitcnt lgkmcnt(4)")
            mf = []
            for i in range(2):
                for j in range(2):
                    acc = vr(ACC + (i * 2 + j) * 16, 16)
                    wf = lambda t: vr(WF + 8 * (b & 1) + 4 * t, 4)
                    af = lambda t: vr(BUF + 8 * b + 4 * t, 4)
                    if role == 0: mf.append("v_mfma_f32_32x32x16_bf16 %s, %s, %s, %s" % (acc, wf(i), af(j), acc))
                    else: mf.append("v_mfma_f32_32x32x16_bf16 %s, %s, %s, %s" % (acc, af(i), wf(j), acc))
            if "k3nomfma" in EXP: mf = ["s_nop 0"] * 4
            a(mf[0]); a(mf[1])
            a("s_cmp_lt_i32 s51, 6")
            a("s_cbranch_scc1 %s_s%d" % (L, b))
            for l in loads((b + NR - 1) % NR): a(l)
            a.label("%s_s%d" % (L, b))
            a(mf[2]); a(mf[3])
            a("s_sub_u32 s51, s51, 1")
            a("s_cmp_lt_i32 s51, -1")
            if b < NR - 1: a("s_cbranch_scc1 K3_red")
            else:
                a("s_cbranch_scc0 %s" % L)
                a("s_branch K3_red")
        for b in range(NR):
            a.label("%s_t%d" % (L, b))
            a("s_cmp_lt_i32 s51, 2")
            a("s_cbranch_scc1 %s_u%d" % (L, b))
            a("s_waitcnt vmcnt(8)")
            a("s_branch %s_r%d" % (L, b))
            a.label("%s_u%d" % (L, b))
            a("s_waitcnt vmcnt(0)")
            a("s_branch %s_r%d" % (L, b))
    a.label("K3_red")
    stamp(a, 2)
    srd(a, 24, 12, WS_USED)
    srd(a, 28, 10, 4096)
    srd(a, 44, 14, 2048 * 1024)
    a("s_lshl_b32 s52, s36, 6")
    a("s_lshl_b32 s53, s33, 4")
    a("s_add_u32 s52, s52, s53")
    a("s_lshl_b32 s53, s52, 2")
    a("s_add_u32 s53, s53, %d" % GW)
    a("s_lshl_b32 s54, s52, 1")
    a("v_lshlrev_b32 v4, 2, v3")
    a("v_lshlrev_b32 v5, 1, v3")
    a("buffer_load_dword v12, v4, s[24:27], s53 offen")
    a("buffer_load_dword v13, v4, s[24:27], s53 offen offset:32")
    a("buffer_load_ushort v14, v5, s[28:31], s54 offen")
    a("buffer_load_ushort v15, v5, s[28:31], s54 offen offset:16")
    RST = 272; WB = 64 * RST
    a("v_and_b32 v6, 31, v1")
    a("v_mul_u32_u24 v6, %d, v6" % RST)
    a("v_lshl_add_u32 v6, v7, 4, v6")
    a("s_mul_i32 s55, s33, %d" % WB)
    a("s_add_u32 s55, s55, 65536")
    a("v_add_u32 v6, s55, v6")
    for i in range(2):
        for j in range(2):
            for g in range(4):
                a("ds_write_b128 v6, %s offset:%d" % (vr(ACC + (i * 2 + j) * 16 + 4 * g, 4), j * 32 * RST + i * 128 + g * 32))
    a("s_lshl_b32 s55, s33, 4")
    a("v_add_u32 v6, s55, v3")
    a("v_mul_u32_u24 v6, %d, v6" % RST)
    a("v_and_b32 v8, 7, v1")
    a("v_lshl_add_u32 v6, v8, 5, v6")
    a("v_add_u32 v6, 65536, v6")
    a("v_lshlrev_b32 v8, 4, v8")
    a("v_lshl_add_u32 v8, v3, 10, v8")
    a("s_lshl_b32 s55, s52, 10")
    a("s_lshl_b32 s56, s37, 7")
    a("s_add_u32 s55, s55, s56")
    a("s_add_u32 s56, s55, 8192")
    a("s_waitcnt lgkmcnt(0)")
    a("s_barrier")
    stamp(a, 3)
    R = 80
    for ps in range(2):
        for wv in range(4):
            for hh in range(2):
                a("ds_read_b128 %s, v6 offset:%d" % (vr(R + 32 * ps + 8 * wv + 4 * hh, 4), wv * WB + ps * 8 * RST + hh * 16))
    a("s_waitcnt vmcnt(0)")
    for ps in range(2):
        g = 12 + ps; b2 = 14 + ps
        a("v_lshlrev_b32 v%d, 16, v%d" % (150 + 6 * ps + 4, b2))
        a("v_sub_f32 v%d, 1.0, v%d" % (150 + 6 * ps, g))
        a("v_cvt_pk_bf16_f32 v%d, v%d, v%d" % (150 + 6 * ps, 150 + 6 * ps, 150 + 6 * ps))
        a("v_lshlrev_b32 v%d, 16, v%d" % (150 + 6 * ps, 150 + 6 * ps))
        a("v_mov_b32 v%d, v%d" % (150 + 6 * ps + 2, g))
    for ps in range(2):
        r = R + 32 * ps; c = 150 + 6 * ps
        a("s_waitcnt lgkmcnt(%d)" % (8 - 8 * ps))
        for k in range(4):
            a("v_pk_add_f32 %s, %s, %s" % (vr(r + 8 + 2 * k, 2), vr(r + 8 + 2 * k, 2), vr(r + 16 + 2 * k, 2)))
        for k in range(4):
            a("v_pk_add_f32 %s, %s, %s op_sel_hi:[1,0]" % (vr(r + 24 + 2 * k, 2), vr(r + 24 + 2 * k, 2), vr(c + 4, 2)))
        for k in range(4):
            a("v_pk_mul_f32 %s, %s, %s op_sel_hi:[1,0]" % (vr(r + 2 * k, 2), vr(r + 2 * k, 2), vr(c + 2, 2)))
        for k in range(4):
            a("v_pk_add_f32 %s, %s, %s" % (vr(r + 8 + 2 * k, 2), vr(r + 8 + 2 * k, 2), vr(r + 24 + 2 * k, 2)))
        for k in range(4):
            a("v_pk_fma_f32 %s, %s, %s, %s op_sel_hi:[1,0,1]" % (vr(r + 2 * k, 2), vr(r + 8 + 2 * k, 2), vr(c, 2), vr(r + 2 * k, 2)))
        for k in range(4): a("v_cvt_pk_bf16_f32 v%d, v%d, v%d" % (r + 16 + k, r + 2 * k, r + 2 * k + 1))
        a("buffer_store_dwordx4 %s, v8, s[44:47], s%d offen" % (vr(r + 16, 4), 55 + ps))
    stamp(a, 4)
    stamp_flush(a, 2, 12)
    a.label("K3_end")
    a("s_endpgm")
    a.label("CODE_END")
    return a.text(), 162

HEADER = open("gated_mix__sliding_block__mixer_token_mlp__prompt.s.ref").read().split("; Override launch")[0]

def build(kernels):
    s = HEADER
    for name, grid, block, lds, _ in kernels:
        s += "; @launch kernel=%s grid=(%d,1,1) block=(%d,1,1) lds=%d\n" % (name, grid, block, lds)
    s += '.amdgcn_target "amdgcn-amd-amdhsa--gfx950"\n.text\n'
    descs = ""
    for name, grid, block, lds, fn in kernels:
        body, vg = fn()
        s += kernel_header(name) + body
        descs += kernel_desc(name, vg)
    s += '.section .rodata,"a"\n' + descs
    if os.environ.get("ALLSC1", "1") == "1":
        out = []
        for l in s.split("\n"):
            if "buffer_store_" in l and "sc1" not in l and "s[84:87]" not in l: l = l.rstrip() + " sc1"
            out.append(l)
        s = "\n".join(out)
    return s

if __name__ == "__main__":
    ks = [("k1_kernel", 256, 512, 2 * K1W, gen_k1), ("k2_kernel", 256, 512, MOFF + 4 * NRM * 4096, gen_k2), ("k3_kernel", 256, 256, 65536 + 69632, gen_k3)]
    LIST = os.environ.get("LIST", "")
    out = sys.argv[1] if len(sys.argv) > 1 else "out.s"
    if len(sys.argv) > 2 and sys.argv[2] == "stamps": STAMPS = True
    txt = build(ks)
    if LIST:
        lines = txt.split("\n")
        ll = [l for l in lines if l.startswith("; @launch")]
        i0 = lines.index(ll[0])
        lines = lines[:i0] + [ll[int(c)] for c in LIST] + lines[i0 + len(ll):]
        txt = "\n".join(lines)
    open(out, "w").write(txt)
```
